```python
import torch

def _softmax(x, axis=-1):
    return torch.softmax(x, dim=axis)
def _gelu(x):
    return torch.nn.functional.gelu(x, approximate="tanh")
def _silu(x):
    return torch.nn.functional.silu(x)
def _sigmoid(x):
    return torch.sigmoid(x)
def _layernorm(x, axis=-1, eps=1e-5):
    m = x.mean(dim=axis, keepdim=True)
    v = x.var(dim=axis, keepdim=True, unbiased=False)
    return (x - m) / torch.sqrt(v + eps)
def _scatter_add(tgt, idx, src, axis=0):
    return tgt.clone().index_add_(axis, idx, src)
def _segment_sum(src, seg, n):
    out = torch.zeros((n,) + src.shape[1:], dtype=src.dtype)
    return out.index_add_(0, seg, src)
def _pad(x, pw):
    flat = tuple(v for pair in reversed(pw) for v in pair)
    return torch.nn.functional.pad(x, flat)

kernel_name = 'gated_mix__compressed_kv_cla__ssm_conv_s5__prompt'

def setup_inputs():

    _w = (lambda a: (lambda t: t.to(torch.bfloat16) if t.is_floating_point() else t)(torch.as_tensor(a)))
    def _A_setup():
        B, H, Sq, Sk, D, M = 1, 32, 2048, 2048, 128, 512
        Dc = 4 * D
        return {
            "x": _w((lambda *s: torch.randn(*s, dtype=torch.bfloat16) * 0.05)(B, Sq, M)),
            "c_kv": _w((lambda *s: torch.randn(*s, dtype=torch.bfloat16) * 0.4)(B, Sk, Dc)),
            "w_q": _w((lambda *s: torch.randn(*s, dtype=torch.bfloat16) * 6.4)(M, H, D) * (M ** -0.5)),
            "w_uk": _w((lambda *s: torch.randn(*s, dtype=torch.bfloat16) * 6.4)(Dc, H, D) * (Dc ** -0.5)),
            "w_uv": _w((lambda *s: torch.randn(*s, dtype=torch.bfloat16) * 0.4)(Dc, H, D) * (Dc ** -0.5)),
            "w_o": _w((lambda *s: torch.randn(*s, dtype=torch.bfloat16) * 0.4)(H, D, M) * ((H * D) ** -0.5)),
        }
    _A_in = _A_setup()

    def _B_setup():
        B, S, D = 1, 2048, 512
        P = D
        Lambda_re = -0.5 * (lambda _x: torch.exp(torch.as_tensor(_x)))((lambda *s: torch.randn(*s, dtype=torch.bfloat16) * 0.4)(P))
        Lambda_im = (lambda *s: torch.randn(*s, dtype=torch.bfloat16) * 0.4)(P) * 1.0
        B_re = (lambda *s: torch.randn(*s, dtype=torch.bfloat16) * 0.4)(P, D) * (D ** -0.5)
        B_im = (lambda *s: torch.randn(*s, dtype=torch.bfloat16) * 0.4)(P, D) * (D ** -0.5)
        C_re = (lambda *s: torch.randn(*s, dtype=torch.bfloat16) * 0.4)(D, P) * (P ** -0.5)
        C_im = (lambda *s: torch.randn(*s, dtype=torch.bfloat16) * 0.4)(D, P) * (P ** -0.5)
        log_dt = (lambda *s: torch.randn(*s, dtype=torch.bfloat16) * 0.4)(P) * 0.3 - 2.0
        Dskip = (lambda *s: torch.randn(*s, dtype=torch.bfloat16) * 0.05)(D)
        return {
            "x": _w((lambda *s: torch.randn(*s, dtype=torch.bfloat16) * 0.05)(B, S, D)),
            "Lambda_re": _w(Lambda_re),
            "Lambda_im": _w(Lambda_im),
            "B_re": _w(B_re),
            "B_im": _w(B_im),
            "C_re": _w(C_re),
            "C_im": _w(C_im),
            "log_dt": _w(log_dt),
            "Dskip": _w(Dskip),
        }
    _B_in = _B_setup()

    return {
        "A_x": _A_in["x"],
        "A_c_kv": _A_in["c_kv"],
        "A_w_q": _A_in["w_q"],
        "A_w_uk": _A_in["w_uk"],
        "A_w_uv": _A_in["w_uv"],
        "A_w_o": _A_in["w_o"],
        "B_x": _B_in["x"],
        "B_Lambda_re": _B_in["Lambda_re"],
        "B_Lambda_im": _B_in["Lambda_im"],
        "B_B_re": _B_in["B_re"],
        "B_B_im": _B_in["B_im"],
        "B_C_re": _B_in["C_re"],
        "B_C_im": _B_in["C_im"],
        "B_log_dt": _B_in["log_dt"],
        "B_Dskip": _B_in["Dskip"],
        "gate_w": _w((lambda *s: torch.randn(*s, dtype=torch.bfloat16) * 0.05)(512) * 16.0),
    }

def reference(A_x, A_c_kv, A_w_q, A_w_uk, A_w_uv, A_w_o, B_x, B_Lambda_re, B_Lambda_im, B_B_re, B_B_im, B_C_re, B_C_im, B_log_dt, B_Dskip, gate_w):
    def _A_ref(x, c_kv, w_q, w_uk, w_uv, w_o):
        B, Sq, M = x.shape[0], x.shape[1], x.shape[2]
        Sk = c_kv.shape[1]
        H, D = w_q.shape[1], w_q.shape[2]
        q = torch.einsum("bqm,mhd->bhqd", x, w_q)
        k = torch.einsum("bkc,chd->bhkd", c_kv, w_uk)
        v = torch.einsum("bkc,chd->bhkd", c_kv, w_uv)
        scores = torch.einsum("bhqd,bhkd->bhqk", q, k) * (D ** -0.5)
        off = Sk - Sq
        qi = torch.arange(Sq)[:, None]
        kj = torch.arange(Sk)[None, :]
        cmask = kj <= (qi + off)
        scores = torch.where(cmask[None, None], scores, -1e9)
        p = _softmax(scores, axis=-1)
        ctx = torch.einsum("bhqk,bhkd->bhqd", p, v)
        return torch.einsum("bhqd,hdm->bqm", ctx, w_o)

    def _B_ref(x, Lambda_re, Lambda_im, B_re, B_im, C_re, C_im, log_dt, Dskip):
        Bsz, L, H = x.shape
        Lam = Lambda_re + 1j * Lambda_im
        Bmat = B_re + 1j * B_im
        Cmat = C_re + 1j * C_im
        dt = torch.exp(log_dt)
        Lam_bar = torch.exp(dt * Lam)
        B_bar = ((Lam_bar - 1.0) / Lam)[:, None] * Bmat
        Bu = torch.einsum("bld,pd->blp", x + 0j, B_bar)
        h = torch.zeros_like(Bu[:, 0, :])
        hs = []
        for t in range(L):
            h = Lam_bar[None, :] * h + Bu[:, t, :]
            hs.append(h)
        hseq = torch.stack(hs, 1)
        y = 2.0 * torch.einsum("blp,dp->bld", hseq, Cmat).real + x * Dskip[None, None, :]
        return y

    x = A_x
    g = _sigmoid((x * gate_w).sum(-1, keepdims=True))
    a = _A_ref(x, A_c_kv, A_w_q, A_w_uk, A_w_uv, A_w_o)
    b = _B_ref(x, B_Lambda_re, B_Lambda_im, B_B_re, B_B_im, B_C_re, B_C_im, B_log_dt, B_Dskip)
    return g * a + (1 - g) * b
```

```python
import re, sys
V0, A0, S0 = 0, 256, 512
VCC, M0, EXEC, SCC = 512+106, 512+124, 512+126, 700
def vr(b, n=1): return f"v{b}" if n == 1 else f"v[{b}:{b+n-1}]"
def ar(b, n=1): return f"a{b}" if n == 1 else f"a[{b}:{b+n-1}]"
def sr(b, n=1): return f"s{b}" if n == 1 else f"s[{b}:{b+n-1}]"
def rr(r, n=1):
    return vr(r, n) if r < 256 else ar(r-256, n)
_rx = re.compile(r'^-?\|?([vas])(?:(\d+)|\[(\d+):(\d+)\])\|?$')
def regs(o):
    o = o.strip()
    if o == 'vcc': return [VCC, VCC+1]
    if o in ('vcc_lo',): return [VCC]
    if o == 'vcc_hi': return [VCC+1]
    if o == 'exec': return [EXEC, EXEC+1]
    if o == 'm0': return [M0]
    m = _rx.match(o)
    if not m: return []
    base = {'v': V0, 'a': A0, 's': S0}[m.group(1)]
    if m.group(2) is not None: return [base+int(m.group(2))]
    return list(range(base+int(m.group(3)), base+int(m.group(4))+1))
TRANS = ('v_exp_f32','v_log_f32','v_rcp_f32','v_rsq_f32','v_sqrt_f32','v_sin_f32','v_cos_f32')
class Ins:
    def __init__(s, text, tag=None):
        s.text = text = text.strip(); s.tag = tag; s.defs = []; s.uses = []; s.srcc = []; s.ab = []
        s.auto = False; s.target = None; s.vm = None; s.lg = None; s.wide = []
        if text.endswith(':'): s.kind = 'label'; s.op = text[:-1]; return
        if text.startswith(';') or text.startswith('.'): s.kind = 'dir'; s.op = ''; return
        p = text.split(None, 1); op = s.op = p[0]; rest = p[1] if len(p) > 1 else ''
        ops = [x.strip() for x in rest.split(',')] if rest else []
        mods = ''
        if ops:
            full = re.split(r'\s+(?=[a-z_0-9]+:|offen|idxen|lds|sc0|sc1|nt\b|glc|clamp|row_|quad_|wave_|bound_)', rest, maxsplit=1)
            ops = [x.strip() for x in full[0].split(',')]; mods = full[1] if len(full) > 1 else ''
        R = [regs(o) for o in ops]; fl = lambda L: [x for l in L for x in l]
        if op.startswith('v_mfma'):
            s.kind = 'mfma'; s.defs = R[0]; s.ab = R[1]+R[2]; s.srcc = R[3]; s.uses = s.ab+s.srcc
        elif op.startswith('v_'):
            s.kind = 'trans' if op.replace('_e32','').replace('_e64','') in TRANS else 'valu'
            s.defs = list(R[0]); s.uses = fl(R[1:])
            if op.startswith('v_cmpx'): s.defs += [EXEC, EXEC+1]
            if 'permlane' in op and 'swap' in op: s.defs = R[0]+R[1]; s.uses = R[0]+R[1]
            if op.startswith(('v_fmac','v_mac','v_writelane','v_pk_fmac')) or 'dpp' in op or 'row_' in mods or 'quad_' in mods or 'PRESERVE' in mods: s.uses += R[0]
            if op.startswith(('v_add_co','v_sub_co','v_addc_co','v_subb_co','v_div_scale')): s.defs += R[1]; s.uses = fl(R[2:])
            if op.startswith('v_cndmask') and len(ops) == 3: s.uses += [VCC, VCC+1]
            if op.startswith('v_div_fmas'): s.uses += [VCC, VCC+1]
            s.dpp = ('dpp' in op or 'row_' in mods or 'quad_' in mods)
            s.uses += [EXEC, EXEC+1]
        elif op.startswith('ds_'):
            if op.startswith('ds_read') or 'permute' in op or '_rtn' in op: s.kind = 'dsr'; s.defs = R[0]; s.uses = fl(R[1:])
            else: s.kind = 'dsw'; s.uses = fl(R); s.wide = fl([r for r in R[1:] if len(r) > 2])
        elif op.startswith(('buffer_', 'global_')):
            if op in ('buffer_inv', 'buffer_wbl2'): s.kind = 'vmst'
            elif 'load' in op and (re.search(r'\blds\b', mods) or '_lds_' in op): s.kind = 'dma'; s.uses = fl(R)+[M0]
            elif 'load' in op: s.kind = 'vmld'; s.defs = R[0]; s.uses = fl(R[1:])
            elif 'atomic' in op and 'sc0' in mods: s.kind = 'vmld'; s.defs = R[0]; s.uses = fl(R)
            else:
                s.kind = 'vmst'; s.uses = fl(R)
                d = R[0] if op.startswith('buffer') else R[1]
                if len(d) > 2: s.wide = d
        elif op.startswith(('s_load', 's_buffer_load', 's_memtime', 's_memrealtime')): s.kind = 'smem'; s.defs = R[0]; s.uses = fl(R[1:])
        elif op == 's_waitcnt':
            s.kind = 'wait'
            m = re.search(r'vmcnt\((\d+)\)', text); s.vm = int(m.group(1)) if m else None
            m = re.search(r'lgkmcnt\((\d+)\)', text); s.lg = int(m.group(1)) if m else None
        elif op == 's_nop': s.kind = 'nop'; s.n = int(ops[0])+1
        elif op == 's_barrier': s.kind = 'bar'
        elif op == 's_endpgm': s.kind = 'end'
        elif op.startswith('s_cbranch') or op == 's_branch':
            s.kind = 'br'; s.target = ops[0]
            if 'scc' in op: s.uses = [SCC]
            if 'vcc' in op: s.uses = [VCC, VCC+1]
            if 'exec' in op: s.uses = [EXEC, EXEC+1]
        elif op in ('WAITVM', 'EPOCH'):
            s.kind = op; s.wtag = ops[0]; s.age = int(ops[1]) if len(ops) > 1 else 0; s.vm = 63
        elif op.startswith('s_'):
            s.kind = 'salu'
            if op.startswith(('s_cmp', 's_bitcmp')): s.defs = [SCC]; s.uses = fl(R)
            elif op in ('s_setprio', 's_sleep', 's_setreg_b32'): s.uses = fl(R)
            else:
                s.defs = list(R[0]); s.uses = fl(R[1:])
                if not op.startswith(('s_mov', 's_cselect', 's_mul', 's_getpc', 's_getreg', 's_movk', 's_pack', 's_brev', 's_ff', 's_sext')): s.defs.append(SCC)
                if op.startswith(('s_cselect', 's_addc', 's_subb', 's_cmov')): s.uses.append(SCC)
                if op.startswith(('s_addk', 's_mulk', 's_cmov', 's_bitset')): s.uses += R[0]
                if 'saveexec' in op: s.defs += [EXEC, EXEC+1]; s.uses += [EXEC, EXEC+1]
        else: raise Exception('unknown op: '+text)
    def mkwait(s):
        t = []
        if s.vm is not None: t.append(f'vmcnt({s.vm})')
        if s.lg is not None: t.append(f'lgkmcnt({s.lg})')
        s.text = 's_waitcnt ' + ' '.join(t)
    def out(s):
        if s.kind == 'EPOCH': return None
        if s.kind == 'WAITVM':
            return f's_waitcnt vmcnt({s.vm})' + (f' lgkmcnt({s.lg})' if s.lg is not None else '')
        return s.text
VMK = ('vmld', 'vmst', 'dma'); LGK = ('dsr', 'dsw', 'smem')
def need_ws(p, c):
    n = 0; pk, ck = p.kind, c.kind
    pd = set(p.defs)
    isv = lambda k: k in ('valu', 'trans')
    if pk == 'mfma':
        if ck == 'mfma':
            if pd & set(c.ab): n = 8
            elif pd & set(c.srcc) and c.srcc != p.defs: n = 6
        elif isv(ck) or ck in VMK or ck in ('dsr', 'dsw'):
            if pd & (set(c.uses) | set(c.defs)): n = 8
            if isv(ck) and set(p.srcc) & set(c.defs): n = max(n, 3)
    elif isv(pk):
        vd = {r for r in pd if r < S0}; sd = pd - vd
        if ck == 'mfma':
            if vd & set(c.uses): n = 2
            if EXEC in sd: n = 4
        if isv(ck):
            if pk == 'trans' and vd & set(c.uses): n = max(n, 1)
            if ('permlane' in c.op or c.dpp) and vd & set(c.uses): n = max(n, 2)
            if c.dpp and EXEC in sd: n = max(n, 5)
            if c.op.startswith(('v_readlane', 'v_readfirstlane', 'v_writelane')):
                if vd & set(c.uses): n = max(n, 1)
                if (sd - {EXEC, EXEC+1}) & set(c.uses): n = max(n, 4)
                if EXEC in sd: n = max(n, 4)
            elif (sd - {EXEC, EXEC+1}) & set(c.uses):
                n = max(n, 4 if c.op.startswith('v_div_fmas') else 2)
        if ck in VMK and sd & set(c.uses): n = max(n, 5)
        if ck == 'br' and sd & set(c.uses): n = max(n, 5 if 'exec' in c.op or 'vcc' in c.op else 0)
        if ck in ('salu','smem') and sd & set(c.uses): n = max(n, 1)
    elif pk == 'salu':
        if M0 in pd and M0 in c.uses: n = 1
        if ck == 'br' and (pd & {VCC, VCC+1, EXEC, EXEC+1} & set(c.uses)): n = max(n, 1)
    if p.wide and (isv(ck) or ck == 'mfma') and set(p.wide) & set(c.defs): n = max(n, 2)
    return n
class Prog:
    def __init__(s): s.L = []; s.log = []
    def __call__(s, text, tag=None):
        r = None
        if isinstance(text, Ins): s.L.append(text); return text
        if isinstance(text, (list, tuple)):
            for t in text: r = s(t, tag)
            return r
        for l in text.split('\n'):
            l = l.strip()
            if l: r = Ins(l, tag); s.L.append(r)
        return r
    def label(s, n): s(n+':')
    def trace(s, start, pol, maxlen=400000):
        lab = {x.op: i for i, x in enumerate(s.L) if x.kind == 'label'}
        cnt = {}; i = lab[start]; T = []
        while True:
            x = s.L[i]; T.append(i)
            assert len(T) < maxlen, 'trace too long'
            if x.kind == 'end': return T
            if x.kind == 'br':
                key = x.tag or x.target
                if x.op == 's_branch': tk = 1
                else:
                    d = pol.get(key, [1, 1, 0] if lab[x.target] < i else [0]); c = cnt.get(id(x), 0); cnt[id(x)] = c+1; tk = d[c % len(d)]
                if tk: i = lab[x.target]; continue
            i += 1
    def onepass(s, start, pol):
        T = s.trace(start, pol); L = s.L; ins = {}; changed = False
        vq = []; lq = []; ep = {}; hist = []
        def addwait(ti, cls, n, nafter_fn):
            nonlocal changed
            j = ti-1; c = 0; pos = None
            while j >= 0 and T[j] == T[j+1]-1 and L[T[j]].kind not in ('label', 'br', 'bar'):
                y = L[T[j]]
                if y.kind == 'mfma': pos = j; break
                if y.kind in (VMK if cls == 'vm' else LGK): c += 1
                if ti-j > 6: break
                j -= 1
            if pos is not None and n-c >= 0 and pos+1 < ti: at = T[pos+1]; n2 = n-c
            else: at = T[ti]; n2 = n
            w = None
            if L[at].kind in ('wait', 'WAITVM') and (cls == 'lg' or L[at].kind == 'wait'): w = L[at]
            elif at == T[ti] and at > 0 and L[at-1].kind == 'wait' and ti > 0 and T[ti-1] == at-1: w = L[at-1]
            else:
                for z in ins.get(at, []):
                    if z.kind == 'wait': w = z
            if w is None: w = Ins('s_waitcnt'); w.auto = True; ins.setdefault(at, []).insert(0, w)
            mx = 63 if cls == 'vm' else 15; n2 = min(n2, mx)
            if cls == 'vm': w.vm = n2 if w.vm is None else min(w.vm, n2)
            else: w.lg = n2 if w.lg is None else min(w.lg, n2)
            if w.kind == 'wait': w.mkwait()
            changed = True
        for ti, i in enumerate(T):
            x = L[i]; k = x.kind
            for z in ins.get(i, []):
                if z.kind == 'nop': hist.append((z, z.n))
                else:
                    if z.vm is not None and len(vq) > z.vm: vq = vq[len(vq)-z.vm:] if z.vm else []
                    if z.lg is not None and len(lq) > z.lg and (z.lg == 0 or not any(e[0].kind == 'smem' for e in lq)): lq = lq[len(lq)-z.lg:] if z.lg else []
            if k in ('label', 'dir'): continue
            if k == 'EPOCH': ep[x.wtag] = ep.get(x.wtag, 0)+1; continue
            if k == 'WAITVM':
                lim = ep.get(x.wtag, 0)-x.age; idx = -1
                for q, e in enumerate(vq):
                    if e[2] == x.wtag and e[3] <= lim: idx = q
                if idx >= 0:
                    n = len(vq)-1-idx
                    if n < x.vm: x.vm = n; changed = True
            if k in ('wait', 'WAITVM'):
                if x.vm is not None and len(vq) > x.vm: vq = vq[len(vq)-x.vm:] if x.vm else []
                if x.lg is not None and len(lq) > x.lg:
                    if x.lg == 0: lq = []
                    elif not any(e[0].kind == 'smem' for e in lq): lq = lq[len(lq)-x.lg:]
                hist.append((x, 1)); continue
            touch = set(x.uses) | set(x.defs)
            if touch:
                for cls, q in (('vm', vq), ('lg', lq)):
                    idx = -1
                    for qi, e in enumerate(q):
                        if e[1] & touch: idx = qi
                    if idx >= 0:
                        n = len(q)-1-idx
                        if cls == 'lg' and any(e[0].kind == 'smem' for e in q): n = 0; idx = len(q)-1
                        addwait(ti, cls, n, None)
                        del q[:idx+1]
                        hist.append((Ins('s_nop 0'), 0))
            d = 0; need = 0
            for (p, w) in reversed(hist):
                if d >= 10: break
                if p.defs or p.wide or p.srcc:
                    r = need_ws(p, x)
                    if r-d > need: need = r-d; cul = p
                d += w
            if need > 0:
                nop = Ins(f's_nop {need-1}'); nop.auto = True; ins.setdefault(i, []).append(nop); changed = True
                s.log.append(f'nop{need} before [{x.text}] after [{cul.text}]')
                hist.append((nop, need))
            if k in VMK: vq.append((x, set(x.defs), x.tag, ep.get(x.tag, 0)))
            if k in LGK:
                lq.append((x, set(x.defs)))
                if k == 'smem' and len(x.defs) > 1: lq.append((x, set()))
            if len(vq) > 63: s.log.append(f'WARN vm overflow at {x.text}'); vq = vq[-63:]
            hist.append((x, x.n if k == 'nop' else 1))
            if len(hist) > 40: del hist[:20]
        if ins:
            N = []
            for i, x in enumerate(L):
                N.extend(ins.get(i, [])); N.append(x)
            s.L = N
        return changed
    def finalize(s, jobs):
        for it in range(50):
            ch = False
            for start, pol in jobs: ch |= s.onepass(start, pol)
            if not ch: return
        raise Exception('no convergence')
    def text(s):
        return '\n'.join(t for t in (x.out() for x in s.L) if t is not None)+'\n'
ORD = {'wait': 0, 'WAITVM': 0, 'EPOCH': 0, 'bar': 1, 'salu': 2, 'nop': 2, 'dsr': 3, 'dsw': 3, 'dma': 4, 'vmld': 4, 'vmst': 4, 'trans': 5, 'valu': 6}
def weave(P, mf, slots, keep=False, raw={}):
    def emit(g):
        l = [x if isinstance(x, Ins) else Ins(x) for x in slots.get(g, [])]
        if not keep: l.sort(key=lambda y: ORD.get(y.kind, 7))
        for y in l: P(y)
        if g in raw: raw[g](P)
    assert all(-1 <= g < len(mf) for g in slots), sorted(slots)
    emit(-1)
    for i, m in enumerate(mf):
        P(m); emit(i)

def cost(x):
    return {'valu': 4, 'dsr': 4, 'dsw': 8, 'trans': 8, 'dma': 8, 'vmld': 8, 'vmst': 8}.get(x.kind, 0)
class Sched:
    def __init__(s, n): s.n = n; s.slots = {g: [] for g in range(-1, n)}; s.used = {g: 0 for g in range(-1, n)}; s.nds = {g: 0 for g in range(-1, n)}; s.nsal = {g: 0 for g in range(-1, n)}; s.tail = []; s.raw = {}
    def mk(s, l, tag=None):
        if not isinstance(l, (list, tuple)): l = [l]
        return [x if isinstance(x, Ins) else Ins(x, tag) for x in l]
    def fits(s, g, l):
        c = sum(cost(x) for x in l); d = sum(x.kind == 'dsr' for x in l); n = sum(x.kind in ('salu', 'wait', 'WAITVM', 'bar') for x in l)
        if s.used[g]+c > 8 or s.nds[g]+d > 1: return False
        tot = s.nsal[g]+n
        lim = 3 if s.used[g]+c == 0 else (1 if (s.used[g]+c <= 4 or any(x.kind == 'trans' for x in s.slots[g]+l)) else 0)
        return tot <= lim
    def put(s, g, l, tag=None):
        l = s.mk(l, tag); s.slots[g] += l; s.used[g] += sum(cost(x) for x in l); s.nds[g] += sum(x.kind == 'dsr' for x in l); s.nsal[g] += sum(x.kind in ('salu', 'wait', 'WAITVM', 'bar') for x in l); return g
    def place(s, l, lo, hi=None, tag=None, force=True):
        l = s.mk(l, tag); top = s.n-1 if hi is None else min(hi, s.n-1)
        for g in range(max(lo, 0), top+1):
            if s.fits(g, l): return s.put(g, l)
        if hi is None: s.tail += l; return s.n
        if lo > top: print('FORCE', l[0].text, lo, top); return s.put(top, l)
        g = min(range(max(lo, 0), top+1), key=lambda q: (s.used[q], q)); return s.put(g, l)
    def stream(s, items, lo, hi=None, step=0, tag=None):
        g = lo; out = []
        for it in items:
            e = g
            if isinstance(it, tuple): e = max(g, it[0]); it = it[1]
            p = s.place(it, e, hi, tag); out.append(p); g = p+step
        return out
    def emit(s, P, mf):
        assert len(mf) == s.n
        weave(P, mf, s.slots, raw=s.raw)
        for x in s.tail: P(x)
```

```python
from asmlib import *
MF = 'v_mfma_f32_16x16x32_bf16'
def mfma(d, a, b, c=None):
    return f"{MF} {rr(d,4)}, {rr(a,4)}, {rr(b,4)}, {'0' if c == 'z' else rr(d if c is None else c,4)}"
A = lambda n: 256+n
WB = 98304
KR, VR = 16384, 81920
WS_CTX, WS_E, WS_G, WS_TS, WS_QS, WS_PART = 0x2000000, 0x3400000, 0x3500000, 0x3600000, 0x3800000, 0x4000000
sW, sH, sJ, sROT, sQUAD, sHQ = 80, 81, 82, 83, 84, 85
sWK, sAK, sT0, sT1 = 86, 87, 74, 75
sST = 88
sMW, sMA, sXL, sXH, sGK, sMQ = 96, 97, 98, 99, 100, 101
vL16 = 0; vWR = 2; vAR = 10; vWD = 14; vAD = 18; vAX = 22; vBD = 24; vGD = 25; vXR = 26; vXP = 28; vBR = 32; vWQ = 33; vT = 1; vT2 = 35
F = [36+4*n for n in range(32)]
agp = [1, 3, 5, 7, 9, 11, 13, 14, 15]
S2 = []; _v = 164; _a = 0
for n in range(32):
    if n in agp: S2.append(A(_a)); _a += 4
    else: S2.append(_v); _v += 4
KVB = [A(36), A(100)]
qW, qX, qXP, qB, qZ, qG, qBU, qCONST = A(36), [A(68), A(100)], [A(84), A(116)], [A(164), A(172)], A(132), A(240), A(192), A(180)
NPRE = 9
QA = [F[n] for n in range(NPRE)] + [S2[n] for n in range(32) if n not in agp]
class Cfg: ts = False; safe = False
nts = [0]
def stamp(P, i):
    if not Cfg.ts: return
    P(f"""s_memrealtime s[48:49]
    v_accvgpr_write_b32 a191, v1
    v_accvgpr_read_b32 v1, a190
    s_waitcnt lgkmcnt(0)
    v_writelane_b32 v1, s48, {i}
    v_accvgpr_write_b32 a190, v1
    v_accvgpr_read_b32 v1, a191""")
def srd(P, d, lo, hi, num, add=None):
    if add is None: P(f"s_mov_b32 s{d}, s{lo}\ns_mov_b32 s{d+1}, s{hi}")
    else: P(f"s_add_u32 s{d}, s{lo}, {add}\ns_addc_u32 s{d+1}, s{hi}, 0")
    P(f"s_mov_b32 s{d+2}, {num}\ns_mov_b32 s{d+3}, 0x20000")
def ids(P, endlab):
    P(f"""s_cmp_ge_u32 s2, 256
    s_cbranch_scc1 {endlab}
    s_load_dwordx16 s[36:51], s[0:1], 0
    s_load_dwordx16 s[52:67], s[0:1], 64
    s_load_dwordx4 s[68:71], s[0:1], 128
    s_load_dwordx2 s[72:73], s[0:1], 144
    v_lshrrev_b32 v1, 6, v0
    v_and_b32 v3, 63, v0
    v_readfirstlane_b32 s{sW}, v1
    s_and_b32 s{sQUAD}, s2, 7
    s_bfe_u32 s{sHQ}, s2, 0x20003
    s_lshr_b32 s{sJ}, s2, 5
    s_lshl_b32 s{sH}, s{sQUAD}, 2
    s_add_u32 s{sH}, s{sH}, s{sHQ}
    v_lshlrev_b32 v0, 4, v3""")
def dmaW(u, icode):
    slot = u % 4; G = []
    adv = [f"s_add_u32 s{sWK}, s{sWK}, 0x40000", f"s_and_b32 s{sWK}, s{sWK}, 0x3c0000"]
    if u < 16 or (u < 20 and icode == 0):
        G.append([f"s_add_u32 m0, s{sMW}, {slot*16384}"])
        for q in range(4): G.append([f"buffer_load_dwordx4 v{vWD+q}, {sr(12 if u < 16 else 16,4)}, s{sWK} offen offset:{q*1024} lds"])
    elif u < 20:
        i = u-16
        for a in range(4):
            G.append([f"s_add_u32 m0, s{sMQ}, {slot*16384+a*2048}"])
            G.append([f"s_add_u32 s{sT1}, s{sROT}, {(4*i+a)*64}"]); G.append([f"s_and_b32 s{sT1}, s{sT1}, 1023"])
            G.append([f"buffer_load_dwordx4 v{vBD}, s[28:31], s{sT1} offen lds"])
    else:
        G.append([f"s_add_u32 m0, s{sMQ}, {slot*16384}"])
        for q in range(2): G.append([f"buffer_load_dwordx4 v{vWQ+q}, s[16:19], s{sWK} offen offset:{q*1024} lds"])
    G += [[adv[0]], [adv[1]]]
    return G
def dmaA(sg, hi):
    G = [[f"s_add_u32 m0, s{sMA}, {(sg%3)*16384+hi*4096}"]]
    if sg < 8: G.append([f"s_add_u32 s{sT0}, s{sAK}, {hi*32768}"])
    else: G.append([f"s_add_u32 s{sT0}, s{sAK}, s{sXH if hi else sXL}"])
    for q in range(4):
        v = vAD+q if (sg < 8 or q < 2) else vAX+q-2
        G.append([f"buffer_load_dwordx4 v{v}, {sr(4 if sg < 8 else 8,4)}, s{sT0} offen offset:{q*1024} lds"])
    if hi: G += [[f"s_add_u32 s{sAK}, s{sAK}, 128"], [f"s_and_b32 s{sAK}, s{sAK}, 1023"]]
    return G
def gateld(u):
    return [[f"buffer_load_dwordx4 {rr(qG+4*(u%4),4)}, v{vGD}, s[32:35], s{sGK} offen"], [f"s_add_u32 s{sGK}, s{sGK}, 64"], [f"s_and_b32 s{sGK}, s{sGK}, 1023"]]
def step_dma(u, icode):
    G = []
    if u+4 < 32: G += dmaW(u+4, icode)
    sg, hi = ((u >> 1)+3, 0) if u & 1 else ((u >> 1)+2, 1)
    if sg < 16: G += dmaA(sg, hi)
    if 16 <= u+3 < 32: G += gateld(u+3)
    return G
def place_dma(S, G, lo, step=3, hi=None):
    g = lo; lastv = lo-step
    for it in G:
        l = S.mk(it, 'kv'); isv = l[0].kind in VMK
        p = S.place(l, max(g+1, lastv+step) if isv else g, hi)
        g = p+(1 if isv else 0)
        if isv: lastv = p
    return g
def wreads(dst, u, iw):
    return [f"ds_read_b64_tr_b16 {rr(dst+2*x,2)}, v{vWR+iw} offset:{(u%4)*16384+x*1024}" for x in range(2)]
def kvreads(u):
    b = KVB[u & 1]; R = []; uu = u & 1; st = ((u >> 1) % 3)*16384
    for i in range(8):
        R.append(f"ds_read_b128 {rr(b+32+4*i,4)}, v{vAR+2*uu+(i>>2)} offset:{st+i*2048}")
        R += wreads(b+4*i, u, i)
    return R
def sync(S, g=0):
    w = Ins('WAITVM kv, 3'); w.lg = 0
    S.put(g, [Ins('EPOCH kv'), w, 's_barrier'])
def tiles(role, n):
    pr, fr = n >> 3, n & 7
    if role == 0: ic = 2*pr+(fr >> 2); ks = fr & 3; return [(2*ks, ic), (2*ks+1, ic)]
    return [(fr, 2*pr), (fr, 2*pr+1)]
def kvstore(n): return f"buffer_store_dwordx4 {vr(F[n],4)}, v{vL16}, s[20:23], s{sST+(n>>2)} offen offset:{(n&3)*1024} sc1"
def qreads_misc(u):
    p = u & 1; st = ((u >> 1) % 3)*16384; R = []
    for t in range(4): R.append(f"ds_read_b128 {rr(qX[p]+4*t,4)}, v{vXR+p} offset:{st+t*2048}")
    for t in range(4): R.append(f"ds_read_b128 {rr(qXP[p]+4*t,4)}, v{vXP+((2*p)^t)} offset:{st+t*512}")
    i, a = (u-16) >> 2, (u-16) & 3
    for c in range(2): R.append(f"ds_read_b128 {rr(qB[p]+4*c,4)}, v{vBR} offset:{i*16384+a*2048+c*1024}")
    return R
def setup(P):
    ids(P, 'LA_end')
    P(f"""v_and_b32 v36, 15, v3
    v_lshrrev_b32 v37, 4, v3
    v_and_b32 v38, 7, v3
    v_lshrrev_b32 v39, 3, v3
    s_lshl_b32 s{sROT}, s{sHQ}, 1
    s_add_u32 s{sROT}, s{sROT}, s{sJ}
    s_and_b32 s{sROT}, s{sROT}, 7
    s_lshl_b32 s{sWK}, s{sROT}, 19
    s_lshl_b32 s{sROT}, s{sROT}, 7
    s_mov_b32 s{sAK}, s{sROT}
    s_mov_b32 s{sGK}, s{sROT}
    s_and_b32 s3, s{sW}, 1
    s_lshr_b32 s33, s{sW}, 1
    s_lshl_b32 s{sMW}, s{sW}, 12
    s_add_u32 s{sMW}, s{sMW}, {WB}
    s_mul_i32 s{sMA}, s33, 49152
    s_lshl_b32 s32, s3, 13
    s_add_u32 s{sMA}, s{sMA}, s32""")
    P(f"""v_lshrrev_b32 v40, 1, v36
    v_xor_b32 v40, v40, v37
    v_and_b32 v41, 1, v36
    v_lshlrev_b32 v41, 4, v41
    v_lshl_or_b32 v41, v37, 13, v41
    v_lshl_or_b32 v42, v40, 5, v41
    s_lshl_b32 s32, s3, 17
    v_add_u32 v{vWD}, s32, v42
    v_add_u32 v{vWD+1}, 31744, v{vWD}
    v_xor_b32 v43, 128, v{vWD}
    v_add_u32 v{vWD+2}, {2*31744}, v43
    v_add_u32 v{vWD+3}, {3*31744}, v43""")
    P(f"""v_lshrrev_b32 v43, 1, v39
    v_xor_b32 v43, v43, v38
    s_lshl_b32 s32, s{sW}, 1
    v_xor_b32 v43, s32, v43
    v_lshlrev_b32 v43, 4, v43
    v_lshl_or_b32 v{vAD}, v39, 10, v43
    v_xor_b32 v43, 64, v{vAD}
    v_add_u32 v{vAD+1}, 7168, v43
    v_add_u32 v{vAD+2}, {2*7168}, v{vAD}
    v_add_u32 v{vAD+3}, {3*7168}, v43
    s_lshl_b32 s34, s{sJ}, 17
    s_lshl_b32 s35, s3, 20
    s_add_u32 s34, s34, s35
    s_lshl_b32 s35, s33, 16
    s_add_u32 s34, s34, s35
    s_lshl_b32 s35, s{sH}, 8
    s_cmp_eq_u32 s33, 0
    s_waitcnt lgkmcnt(0)
    s_cselect_b32 s12, s42, s44
    s_cselect_b32 s13, s43, s45""")
    stamp(P, 0)
    srd(P, 12, 12, 13, '0x3fe100', 's35')
    srd(P, 4, 38, 39, 65536, 's34')
    seq = [dmaW(0, 0)+dmaA(0, 0)+dmaA(0, 1), dmaW(1, 0), dmaW(2, 0)+dmaA(1, 0)+dmaA(1, 1), dmaW(3, 0)+dmaA(2, 0)]
    for i, G in enumerate(seq):
        if i: P('EPOCH kv')
        for g in G: P(g, 'kv')
    srd(P, 16, 40, 41, '0x3fe100', 's35')
    P(f"s_lshl_b32 s34, s{sW}, 14"); srd(P, 8, 36, 37, 0, 's34'); P("s_sub_u32 s10, 0x200000, s34")
    P(f"s_lshl_b32 s34, s{sH}, 20"); srd(P, 20, 72, 73, '0x100000', 's34')
    srd(P, 24, 70, 71, 256); srd(P, 76, 72, 73, '0x10000000')
    P(f"""s_lshl_b32 s34, s{sH}, 14
    s_cmp_eq_u32 s3, 0
    s_cselect_b32 s28, s54, s56
    s_cselect_b32 s29, s55, s57""")
    srd(P, 28, 28, 29, 16384, 's34')
    P(f"""s_lshl_b32 s{sXL}, s{sJ}, 17
    s_sub_u32 s{sXH}, 0x1e0000, s{sXL}
    s_lshl_b32 s34, s{sJ}, 16
    s_lshl_b32 s35, s3, 15
    s_add_u32 s34, s34, s35
    s_lshl_b32 s35, s33, 13
    s_add_u32 s{sST}, s34, s35""")
    for i in range(1, 8): P(f"s_add_u32 s{sST+i}, s{sST}, {((i>>1)&1)*16384+(i>>2)*524288+(i&1)*4096}")
    P(f"""v_lshrrev_b32 v44, 2, v36
    v_and_b32 v45, 1, v37
    v_lshl_or_b32 v45, v45, 2, v44
    v_lshl_add_u32 v46, v37, 3, v44
    v_lshlrev_b32 v46, 8, v46
    v_lshl_or_b32 v46, v45, 5, v46
    v_and_b32 v47, 3, v36
    v_lshl_or_b32 v46, v47, 3, v46
    s_lshl_b32 s34, s33, 13
    s_add_u32 s34, s34, {WB}
    v_add_u32 v{vWR}, s34, v46""")
    for d in range(1, 8): P(f"v_xor_b32 v{vWR+d}, {d*32}, v{vWR}")
    P(f"""v_lshlrev_b32 v46, 4, v40
    v_lshl_or_b32 v46, v36, 7, v46
    s_mul_i32 s34, s3, {49152+64}
    s_lshl_b32 s35, s3, 6
    v_xor_b32 v45, s35, v46
    s_mul_i32 s34, s3, 49152
    v_add_u32 v{vAR}, s34, v45
    v_xor_b32 v{vAR+1}, 32, v{vAR}
    v_xor_b32 v{vAR+2}, 64, v{vAR}
    v_xor_b32 v{vAR+3}, 96, v{vAR}
    s_lshl_b32 s35, s{sW}, 5
    v_xor_b32 v45, s35, v46
    v_add_u32 v{vXR}, s{sMA}, v45
    v_xor_b32 v{vXR+1}, 64, v{vXR}""")
    P(f"""s_mul_i32 s34, s3, 3
    v_xor_b32 v44, s34, v44
    v_lshrrev_b32 v45, 1, v47
    v_xor_b32 v45, v45, v37
    v_lshlrev_b32 v46, 1, v44
    v_xor_b32 v45, v45, v46
    v_lshlrev_b32 v45, 4, v45
    v_lshl_or_b32 v45, v47, 7, v45
    v_and_b32 v46, 1, v44
    v_lshl_or_b32 v45, v46, 13, v45
    v_lshrrev_b32 v46, 1, v44
    v_mul_u32_u24 v46, 49152, v46
    s_lshl_b32 s34, s{sW}, 11
    v_add3_u32 v{vXP}, v45, v46, s34
    v_xor_b32 v{vXP+1}, 32, v{vXP}
    v_xor_b32 v{vXP+2}, 64, v{vXP}
    v_xor_b32 v{vXP+3}, 96, v{vXP}
    v_add_u32 v{vBR}, {WB+8192}, v{vL16}
    v_lshlrev_b32 v{vGD}, 4, v37
    v_lshl_or_b32 v{vBD}, v36, 10, v{vGD}
    s_lshl_b32 s34, s{sW}, 15
    s_sub_u32 s34, 0x18000, s34
    v_add_u32 v{vAX}, s34, v{vAD+2}
    v_add_u32 v{vAX+1}, s34, v{vAD+3}
    s_lshl_b32 s34, s3, 7
    v_xor_b32 v45, s34, v42
    s_lshl_b32 s34, s{sW}, 16
    v_add_u32 v{vWQ}, s34, v45
    v_add_u32 v{vWQ+1}, 31744, v{vWQ}
    s_lshl_b32 s{sMQ}, s3, 10
    s_add_u32 s{sMQ}, s{sMQ}, {WB+8192}""")
    srd(P, 32, 66, 67, 1024)
    if Cfg.safe: P("s_mov_b32 s68, 0")
    P('WAITVM kv, 3\ns_barrier')
    for r in kvreads(0): P(r)
vC = 10
def ssm_loads():
    return [[f"s_lshl_b32 s{sT1}, s{sH}, 5"], ["v_bfe_u32 v72, v0, 4, 4"], [f"v_lshl_add_u32 v72, v72, 1, s{sT1}"],
            ["global_load_ushort v73, v72, s[50:51]"], ["global_load_ushort v74, v72, s[52:53]"], ["global_load_ushort v75, v72, s[62:63]"]]
def ssm_consts():
    t = f"""v_lshlrev_b32 v73, 16, v73
    v_lshlrev_b32 v74, 16, v74
    v_lshlrev_b32 v75, 16, v75
    v_mul_f32 v75, 0x3fb8aa3b, v75
    v_exp_f32 v75, v75
    v_mul_f32 v80, v73, v73
    v_cvt_pk_bf16_f32 v75, v75, v75
    v_lshlrev_b32 v75, 16, v75
    v_mul_f32 v76, v75, v73
    v_mul_f32 v77, v75, v74
    v_mul_f32 v76, 0x3fb8aa3b, v76
    v_mul_f32 v77, 0.15915494, v77
    v_exp_f32 v76, v76
    v_rndne_f32 v78, v77
    v_sub_f32 v77, v77, v78
    v_cos_f32 v78, v77
    v_sin_f32 v79, v77
    v_fmac_f32 v80, v74, v74
    v_rcp_f32 v80, v80
    v_mul_f32 v10, v78, v76
    v_mul_f32 v11, v79, v76
    v_add_f32 v81, -1.0, v10
    v_mul_f32 v16, v81, v73
    v_fmac_f32 v16, v11, v74
    v_mul_f32 v17, v11, v73
    v_fma_f32 v17, -v81, v74, v17
    v_mul_f32 v16, v16, v80
    v_mul_f32 v17, v17, v80""".split('\n')
    for i in range(6):
        a, b = (10 if i == 0 else 12 if i <= 4 else 14), (12 if i <= 3 else 14)
        t += [f"v_mul_f32 v81, v{a+1}, v{a+1}", f"v_mul_f32 v{b+1}, v{a}, v{a+1}", f"v_fma_f32 v{b}, v{a}, v{a}, -v81", f"v_add_f32 v{b+1}, v{b+1}, v{b+1}"]
    return t
def kv(P, role):
    acc = {}
    for n in range(32):
        t = tiles(role, n); acc[t[0]] = F[n]; acc[t[1]] = S2[n]
    def m(u, iw, ic):
        b = KVB[u & 1]; w, c = b+4*iw, b+32+4*ic
        return mfma(acc[(iw, ic)], w if role == 0 else c, c if role == 0 else w, 'z' if u == 0 else None)
    for u in range(14):
        S = Sched(64); sync(S)
        S.stream(kvreads(u+1), 1, step=2)
        place_dma(S, step_dma(u, role), 1, 4)
        S.emit(P, [m(u, iw, ic) for iw in range(8) for ic in range(8)])
    mf = []; done = {}
    for n in range(16, 32): mf += [m(14, *t) for t in tiles(role, n)]
    for n in range(16): mf += [m(14, *t) for t in tiles(role, n)]+[m(15, *t) for t in tiles(role, n)]; done[n] = len(mf)-1
    for n in range(16, 32): mf += [m(15, *t) for t in tiles(role, n)]; done[n] = len(mf)-1
    S = Sched(128); sync(S); sync(S, 62)
    S.stream(kvreads(15), 1, step=1)
    place_dma(S, step_dma(14, role), 25, 3, 61); place_dma(S, step_dma(15, role), 63, 3)
    if role: S.stream([f"v_subrev_u32 v{vWR+d}, 8192, v{vWR+d}" for d in range(8)], 26)
    qr = qreads_misc(16); items = qr[:4]
    for d in range(8): items += wreads(qW+4*d, 16, d)
    S.stream(items+qr[4:], 96, step=1)
    g = 0
    for n in range(32):
        f, s2 = F[n], S2[n]; it = [f"v_cvt_pk_bf16_f32 v{f}, v{f}, v{f+1}", f"v_cvt_pk_bf16_f32 v{f+1}, v{f+2}, v{f+3}"]
        if s2 >= 256:
            t = S2[12 if n >= 13 else n-1]; it += [f"v_accvgpr_read_b32 v{t+k}, {rr(s2+k)}" for k in range(4)]; s2 = t
        it += [f"v_cvt_pk_bf16_f32 v{f+2}, v{s2}, v{s2+1}", f"v_cvt_pk_bf16_f32 v{f+3}, v{s2+2}, v{s2+3}"]
        g = S.stream(it, max(g, done[n]+4))[-1]
        if n < NPRE: S.place(kvstore(n), g+1, tag='kv')
    S.emit(P, mf)
def akdma(kind, b):
    base = (KR if kind == 'K' else VR)+(b % 8)*8192
    return [[f"s_add_u32 m0, s{sMQ}, {base-WB}"], [f"s_add_u32 s{sT0}, s{sMQ}, {(b*16384+(8192 if kind == 'V' else 0)-WB) & 0xffffffff}"]] + \
           [[f"buffer_load_dwordx4 v{vL16}, s[20:23], s{sT0} offen offset:{q*1024} sc1 lds"] for q in range(2)]
def flagadd(P, val, lab):
    P(f"""s_cmp_lg_u32 s{sW}, 0
    s_cbranch_scc1 {lab}
    s_mov_b64 exec, 1
    v_mov_b32 v{vT}, {val}
    s_lshl_b32 s{sT1}, s{sH}, 2
    buffer_atomic_add v{vT}, off, s[24:27], s{sT1} sc1
    s_mov_b64 exec, -1
    {lab}:""")
def polld(reg): return [[f"s_lshl_b32 s{sT1}, s{sH}, 2"], [f"buffer_load_dword v{reg}, off, s[24:27], s{sT1} sc1"]]
def pollchk(P, reg, shift, lab):
    P(f"""{lab}_r:
    v_readfirstlane_b32 s{sT0}, v{reg}
    s_bfe_u32 s{sT0}, s{sT0}, {hex(0x80000+shift)}
    s_cmp_ge_u32 s{sT0}, 8""")
    P(f"s_cbranch_scc1 {lab}", 'pollok')
    if Cfg.safe:
        P("s_add_u32 s68, s68, 1\ns_cmp_gt_u32 s68, 0x40000"); P(f"s_cbranch_scc1 {lab}", 'never')
    P(f"""s_sleep 1
    s_lshl_b32 s{sT1}, s{sH}, 2
    buffer_load_dword v{reg}, off, s[24:27], s{sT1} sc1
    s_waitcnt vmcnt(0)
    s_branch {lab}_r
    {lab}:""")
def qphase(P, zero_regs):
    P(f"s_lshl_b32 s{sMQ}, s{sW}, 11\ns_add_u32 s{sMQ}, s{sMQ}, {WB}")
    nst = {16: 2, 17: 2, 18: 2, 19: 2, 20: 2, 21: 2, 22: 1, 23: 2, 24: 2, 25: 1, 26: 2, 27: 2, 28: 1}
    pro = {28: ['K0', 'K1', 'K6'], 29: ['V0', 'K2', 'V1'], 30: ['K3', 'V2', 'V3'], 31: ['K4', 'K5', 'V4', 'K7']}
    n = NPRE; zero_regs = list(zero_regs)
    for u in range(16, 32):
        p = u & 1; z = 'z' if u == 16 else None
        mf = [mfma(QA[d*4+t], qW+4*d, qX[p]+4*t, z) for d in range(8) for t in range(4)]
        mf += [mfma(qZ+4*t, qG+4*(u % 4), qX[p]+4*t, z) for t in range(4)]
        mf += [mfma(qBU+8*t+4*c, qXP[p]+4*t, qB[p]+4*c, z) for t in range(4) for c in range(2)]
        o = 0
        S = Sched(len(mf)); sync(S)
        if u == 22: S.raw[0] = lambda P: flagadd(P, 1, 'LA_f1')
        if u == 28: S.raw[0] = lambda P: pollchk(P, vT2, 0, 'LA_p1')
        if u == 31: S.raw[0] = lambda P: flagadd(P, 256, 'LA_f2')
        if u < 31:
            for d in range(8): S.stream(wreads(qW+4*d, u+1, d), 4*d+3+o, step=1)
            S.stream(qreads_misc(u+1), 1+o, step=3)
        G = []
        for k in range(nst.get(u, 0)): G.append([kvstore(n)]); n += 1
        G += step_dma(u, None)
        if u == 25: G += polld(vT2)
        if u == 19: G += ssm_loads()
        for kb in pro.get(u, []): G += akdma(kb[0], int(kb[1]))
        place_dma(S, G, 1+o, 2)
        if u in (23, 24): S.stream(ssm_consts()[:26] if u == 23 else ssm_consts()[26:], 1)
        if u >= 30:
            k = 40 if u == 30 else len(zero_regs)
            S.stream([f"v_mov_b32 v{r}, 0" if r < 256 else f"v_accvgpr_write_b32 {rr(r)}, 0" for r in zero_regs[:k]], 1); zero_regs = zero_regs[k:]
        S.emit(P, mf)
    assert n == 32
```

```python
from ka1 import *
vKA, vVA, vVB, vG, vTRI, vPL = 1, 2, 3, 4, 18, 20
vCq = 40; vS = 200; vP = [[232, 236, 240, 244], [248, 252, 64, 68]]; vO = 72
aQ, aK, aV, aL, aONE = A(0), A(96), A(128), A(160), A(184)
Oreg = [vO, vO+32, vO+64, vO+96, A(0), A(224)]
SET1, SET2 = [0, 1, 2, 3], [4, 5, 2, 3]
sF1, sM1, sB1, sFK, sMK, sBK, sBV, sKo, sVo, sN, sINC, sINC7, sPASS = 4, 5, 6, 7, 8, 9, 10, 11, 12, 13, 14, 15, 16
sCT = 88; sCH = 92; sEX = 93; sQS = 94
XA2 = 147456
FULL = [['f']*4, ['f']*4]
def cmul_add(h, l, u):
    return [f"v_pk_fma_f32 {vr(u,2)}, {vr(h,2)}, {vr(l,2)}, {vr(u,2)} op_sel_hi:[1,0,1]",
            f"v_pk_fma_f32 {vr(u,2)}, {vr(h,2)}, {vr(l,2)}, {vr(u,2)} op_sel:[1,1,0] op_sel_hi:[0,1,1] neg_lo:[0,1,0]"]
def rdu(t, d): return [f"v_accvgpr_read_b32 v{d+c}, {rr(qBU+8*(t>>2)+4*c+(t&3))}" for c in range(2)]
def att_scalars(P):
    P(f"""s_and_b32 s3, s{sW}, 1
    s_lshr_b32 s33, s{sW}, 1
    s_lshl_b32 s34, s3, 12
    s_add_u32 s{sBK}, s34, {KR}
    s_add_u32 s{sBV}, s34, {VR}
    s_cmp_eq_u32 s33, 0
    s_cselect_b32 s{sB1}, s{sBK}, s{sBV}
    s_cselect_b32 s{sM1}, 0, {5*8192}
    s_cselect_b32 s{sF1}, {8*16384-(5*16384+8192)}, 0
    s_cselect_b32 s{sINC}, 16384, 0
    s_add_u32 s{sINC}, s{sINC}, 8192
    s_add_u32 s{sF1}, s{sF1}, s34
    s_add_u32 s{sF1}, s{sF1}, {5*16384+8192}
    s_cmp_eq_u32 s{sJ}, 7
    s_cselect_b32 s{sINC7}, s{sINC}, 16384
    s_lshl_b32 s35, s{sJ}, 2
    s_add_u32 s35, s35, s33
    s_add_u32 s35, s35, 14
    s_lshl_b32 s{sFK}, s35, 14
    s_add_u32 s{sFK}, s{sFK}, s34
    s_lshl_b32 s{sMK}, s35, 13
    s_and_b32 s{sMK}, s{sMK}, 0xffff
    s_mov_b32 s{sKo}, 8192
    s_mov_b32 s{sVo}, 0
    v_add_u32 v{vKA}, 8192, v0
    v_add_u32 v{vVB}, {VR}, v0
    v_add_u32 v{vVA}, {VR}, v0""")
def qepi(P):
    h = None
    for t in range(16):
        d = 24+2*(t % 4); P(rdu(t, d))
        if t: P(cmul_add(h, vC, d))
        h = d
    P(f"""s_and_b32 s3, s{sW}, 1
    s_sub_u32 s34, 15, s{sJ}
    s_cmp_lt_u32 s{sW}, 2
    s_cselect_b32 s34, s{sJ}, s34
    s_lshl_b32 s{sCH}, s34, 1
    s_add_u32 s{sCH}, s{sCH}, s3
    s_lshl_b32 s34, s{sCH}, 9
    s_lshl_b32 s35, s{sH}, 14
    s_add_u32 s34, s34, s35
    s_add_u32 s34, s34, {WS_E}
    v_lshrrev_b32 v22, 1, v0""")
    P(f"buffer_store_dwordx2 {vr(h,2)}, v22, s[76:79], s34 offen sc1", 'kv')
    for ops in (["v_accvgpr_read_b32 v{g}, {z}"], ["v_cvt_pk_bf16_f32 v{g}, v{g}, v{g}"], ["v_lshlrev_b32 v{g}, 16, v{g}"], ["v_mul_f32 v{g}, 0xbfb8aa3b, v{g}"],
                ["v_exp_f32 v{g}, v{g}"], ["v_add_f32 v{g}, 1.0, v{g}"], ["v_rcp_f32 v{g}, v{g}"], ["v_cvt_pk_bf16_f32 v{g}, v{g}, v{g}"], ["v_lshlrev_b32 v{g}, 16, v{g}"]):
        for t in range(4): P(ops[0].format(g=vG+t, z=rr(qZ+4*t)))
    P(f"""s_mul_i32 s34, s{sQUAD}, {128*20480}
    s_lshl_b32 s35, s{sHQ}, 12
    s_add_u32 s34, s34, s35
    s_add_u32 s34, s34, {WS_CTX}
    s_mul_i32 s35, s{sJ}, {8*20480}
    s_mul_i32 s32, s{sW}, 20480
    s_add_u32 s33, s34, s35
    s_add_u32 s{sCT}, s33, s32
    s_sub_u32 s{sCT+1}, s33, s32
    s_add_u32 s{sCT+1}, s{sCT+1}, {7*20480}
    s_sub_u32 s33, s34, s35
    s_add_u32 s33, s33, {120*20480}
    s_add_u32 s{sCT+2}, s33, s32
    s_sub_u32 s{sCT+3}, s33, s32
    s_add_u32 s{sCT+3}, s{sCT+3}, {7*20480}
    s_lshr_b32 s33, s{sW}, 1
    s_mul_i32 s{sEX}, s33, {XA2}
    s_lshl_b32 s34, s3, 13
    s_add_u32 s{sEX}, s{sEX}, s34
    v_add_u32 v22, s{sEX}, v0
    s_lshl_b32 s34, s3, 14
    s_add_u32 s34, s34, {XA2}
    s_sub_u32 s34, s34, s{sEX}
    v_add_u32 v23, s34, v0
    s_lshl_b32 s{sQS}, s2, 2
    s_add_u32 s{sQS}, s{sQS}, s{sW}
    s_lshl_b32 s{sQS}, s{sQS}, 13
    s_add_u32 s{sQS}, s{sQS}, {WS_QS}
    s_add_u32 s{sQS+1}, s{sQS}, 4096
    s_lshl_b32 s34, s{sJ}, 16
    s_sub_u32 s22, 0x100000, s34
    s_mov_b32 s34, 0x3e0293ee
    s_mov_b32 s35, 0x3e0293ee
    s_mov_b32 s{sPASS}, 0""")
    for t in (2, 3, 0, 1):
        for ks in range(4):
            a, b = QA[8*ks+t], QA[8*ks+4+t]
            for x in (a, a+2, b, b+2): P(f"v_pk_mul_f32 {vr(x,2)}, {vr(x,2)}, s[34:35]")
            P(f"""v_cvt_pk_bf16_f32 v{a}, v{a}, v{a+1}
            v_cvt_pk_bf16_f32 v{a+1}, v{a+2}, v{a+3}
            v_cvt_pk_bf16_f32 v{a+2}, v{b}, v{b+1}
            v_cvt_pk_bf16_f32 v{a+3}, v{b+2}, v{b+3}""")
            if t >= 2: P(f"ds_write_b128 v22, {vr(a,4)} offset:{((t-2)*4+ks)*1024}")
            else:
                P(f"buffer_store_dwordx4 {vr(a,4)}, v0, s[76:79], s{sQS+t} offen offset:{ks*1024}")
                for k in range(4): P(f"v_accvgpr_write_b32 {rr(aQ+16*t+4*ks+k)}, v{a+k}")
    P(f"s_cmp_lg_u32 s{sH}, 0"); P("s_cbranch_scc1 LA_ng", 'ng')
    P(f"""v_bfe_u32 v24, v0, 4, 4
    v_lshlrev_b32 v24, 2, v24
    s_lshl_b32 s34, s{sJ}, 9
    s_lshl_b32 s35, s{sW}, 6""")
    for t in range(4):
        P(f"s_add_u32 s33, s34, {WS_G}" if t < 2 else f"s_sub_u32 s33, {WS_G+15*512}, s34")
        P("s_add_u32 s33, s33, s35" if t % 2 == 0 else f"s_sub_u32 s33, s33, s35\ns_add_u32 s33, s33, {7*64}")
        P(f"buffer_store_dword v{vG+t}, v24, s[76:79], s33 offen")
    P("LA_ng:")
    att_scalars(P)
    P(f"""v_bfe_u32 v24, v0, 4, 4
    v_lshrrev_b32 v25, 8, v0
    v_lshlrev_b32 v25, 2, v25
    v_sub_u32 v24, v24, v25
    v_mov_b32 v26, 0xffff""")
    for k in range(2):
        P(f"""v_cmp_le_i32 vcc, {2*k}, v24
        v_cndmask_b32 v{vTRI+k}, 0, v26, vcc
        v_cmp_le_i32 vcc, {2*k+1}, v24
        v_cndmask_b32 v{vTRI+k}, v{vTRI+k}, -1, vcc""")
    P("v_mov_b32 v26, 0x3f803f80")
    for k in range(4): P(f"v_accvgpr_write_b32 {rr(aONE+k)}, v26")
    for r in range(vCq, vCq+24, 2): P(f"v_mov_b64 {vr(r,2)}, 0")
    w = Ins('WAITVM kv, 3'); w.lg = 0
    P('EPOCH kv'); P(w); P('s_barrier')
    for i in range(8): P(f"ds_read_b128 {rr(aQ+32+4*i,4)}, v22 offset:{i*1024}")
    P("LA_att:")
    for i in range(8): P(f"ds_read_b128 {rr(aK+4*i,4)}, v0 offset:{KR+i*1024}")
LATEZ = list(range(164, 200))+[A(r) for r in range(160, 184)]+[A(r) for r in range(240, 256)]
EARLYZ = [A(r) for r in range(224, 240)]+list(range(72, 164))
zmov = lambda r: f"v_mov_b32 v{r}, 0" if r < 256 else f"v_accvgpr_write_b32 {rr(r)}, 0"
def dmaops(so, n=4): return [[f"buffer_load_dwordx4 v0, s[20:23], s{so} offen offset:{q*1024} sc1 lds"] for q in range(n)]
def dma1():
    return [[f"s_add_u32 m0, s{sM1}, s{sB1}"]]+dmaops(sF1)+[[f"s_add_u32 s{sF1}, s{sF1}, 16384"], [f"s_add_u32 s{sM1}, s{sM1}, 8192"], [f"s_and_b32 s{sM1}, s{sM1}, 0xffff"]]
def dma2():
    return [[f"s_add_u32 m0, s{sMK}, s{sBK}"], [f"s_xor_b32 s{sT1}, s{sMK}, 0x8000"], [f"s_sub_u32 s{sT0}, s{sFK}, 57344"]]+dmaops(sFK)+[[f"s_add_u32 m0, s{sT1}, s{sBV}"]]+dmaops(sT0) + \
           [[f"s_add_u32 s{sFK}, s{sFK}, 32768"], [f"s_add_u32 s{sMK}, s{sMK}, 16384"], [f"s_and_b32 s{sMK}, s{sMK}, 0xffff"]]
def dmaX(w):
    return [[f"s_lshl_b32 s{sT0}, s{sJ}, 15"], [f"s_add_u32 s{sT1}, s{sT0}, {13*8192}"], [f"s_and_b32 s{sT1}, s{sT1}, 0xffff"], [f"s_add_u32 m0, s{sT1}, {KR+w*2048}"],
            [f"s_lshl_b32 s{sT0}, s{sT0}, 1"], [f"s_add_u32 s{sT0}, s{sT0}, {13*16384+w*2048}"]]+dmaops(sT0, 2)
NH = 26
def sm_items(vis, par, k0, k1):
    R = []
    for c in range(k0//2, k1//2):
        kt, qt, hf = c >> 3, (c >> 1) & 3, c & 1; s = vS+16*kt+4*qt+2*hf; p = vP[par][qt]+2*kt+hf; v = vis[kt][qt]
        if v == 'n':
            if vis[1-kt][qt] != 'n': R.append((kt, qt, [], [f"v_mov_b32 v{p}, 0"]))
            continue
        post = [f"v_cvt_pk_bf16_f32 v{p}, v{s}, v{s+1}"]
        if v == 't': post.append(f"v_and_b32 v{p}, v{p}, v{vTRI+hf}")
        R.append((kt, qt, [f"v_exp_f32 v{s}, v{s}", f"v_exp_f32 v{s+1}, v{s+1}"], post))
    return R
def body(P, n, setA, visA, setB, visB, G=(), kread=True, incK='8192', incV='8192', head=True, allexp=False, vnext=False, vread=True,
         bar=3, extra=(), extra_lo=1, raw={}, pre=(), loopctl=None, estep=2):
    mf = []; done = {}; first = {}; klast = {}; vfirst = {}; vlast = {}; pfirst = {}
    if visA:
        for kt in range(2):
            for ks in range(4):
                for qt in range(4):
                    if visA[kt][qt] == 'n': continue
                    s = vS+16*kt+4*qt; i = setA[qt]
                    first.setdefault((kt, qt), len(mf)); done[(kt, qt)] = len(mf); klast[4*kt+ks] = len(mf)
                    mf.append(mfma(s, aK+16*kt+4*ks, aQ+16*i+4*ks, vCq+4*i if ks == 0 else None))
    nA = len(mf)
    if visB:
        live = [qt for qt in range(4) if visB[0][qt] != 'n' or visB[1][qt] != 'n']
        for dt in range(8):
            for qt in live:
                vfirst.setdefault(dt, len(mf)); vlast[dt] = len(mf); pfirst.setdefault(qt, len(mf))
                mf.append(mfma(Oreg[setB[qt]]+4*dt, aV+4*dt, vP[n & 1][qt]))
        for qt in live: mf.append(mfma(aL+4*setB[qt], aONE, vP[n & 1][qt]))
    N = len(mf); S = Sched(N); S.raw = dict(raw)
    for g in raw: S.used[g] = 8; S.nsal[g] = 3
    if bar is not None:
        w = Ins(f'WAITVM kv, {bar}'); w.lg = 0; S.put(0, [Ins('EPOCH kv'), w, 's_barrier'])
    cg = []
    def softmax(items, lo, dl):
        g = lo
        for kt, qt, ex, post in items:
            hi = dl(kt, qt)
            if ex:
                e = max(g, done[(kt, qt)]+4) if hi is None else g
                if hi is not None and e+2 > hi-1: e = max(1, hi-3)
                pos = S.stream(ex, e, None if hi is None else hi-1, step=estep); g = pos[-1]+estep; e = pos[-1]+1
            else: e = g
            if hi is not None: e = min(e, hi)
            pp = S.stream(post, e, hi); cg.append(pp[0])
        return g
    g = 1
    if visB and head:
        g = softmax(sm_items(visB, n & 1, NH, 32), 1, lambda kt, qt: min(first.get((kt, qt), 99), pfirst[qt]-1)-1)
    if visA: softmax(sm_items(visA, (n+1) & 1, 0, 32 if allexp else NH), g, lambda kt, qt: None)
    def reads(items):
        g = 1
        for lo, hi, t in items:
            lo = max(lo, g); l = S.mk(t); c = [x for x in cg if lo <= x <= min(hi, lo+4) and x < N and S.fits(x, l)]
            p = S.put(min(c), l) if c else S.place(l, min(lo, hi), hi); g = p+1 if p < hi else p
        return g
    def upd(so, inc, va, vb, lo):
        S.stream([f"s_add_u32 s{so}, s{so}, {inc}", f"s_and_b32 s{so}, s{so}, 0xffff", (lo, f"v_add_u32 v{va}, s{so}, v{vb}")], 1, step=1)
    if visB and vread:
        g = reads([(1, max(1, vfirst[dt]-5), f"ds_read_b128 {rr(aV+4*dt,4)}, v{vVA} offset:{dt*1024}") for dt in range(8)])
        if not vnext: upd(sVo, incV, vVA, vVB, g)
    if vnext:
        S.put(-1, [f"s_add_u32 s{sVo}, s{sVo}, {incV}", f"s_and_b32 s{sVo}, s{sVo}, 0xffff", f"v_add_u32 v{vKA}, s{sVo}, v{vVB}"])
        reads([(vlast[dt], N-1, f"ds_read_b128 {rr(aV+4*dt,4)}, v{vKA} offset:{dt*1024}") for dt in range(8)])
    if kread:
        g = reads([(max(klast.get(i, 0), min(N-37+4*i, N-14+i)), N-1, f"ds_read_b128 {rr(aK+4*i,4)}, v{vKA} offset:{KR+i*1024}") for i in range(8)])
        upd(sKo, incK, vKA, 0, g)
    if pre: place_dma(S, pre, 1, 2)
    if G: place_dma(S, G, 4 if pre else 1, 4 if N > 50 else 2)
    if extra: place_x(S, extra, extra_lo)
    if loopctl: S.place(f"s_sub_u32 s{sN}, s{sN}, 1", 1)
    S.emit(P, mf)
    if loopctl:
        if loopctl[1]: pollchk(P, vPL, 8, loopctl[1])
        P(f"s_cmp_lg_u32 s{sN}, 0\ns_cbranch_scc1 {loopctl[0]}")
def place_x(S, items, lo):
    g = lo
    for it in items:
        l = S.mk(it); k = l[0].kind
        p = S.place(l, g+1 if k != 'valu' else g); g = p+(0 if k == 'valu' else 1)
def oepi(idx, lreg, first):
    o = Oreg[idx]; R = [f"v_subrev_u32 v{21 if first else 22}, 0x30800000, v{lreg}"]
    if not first: R.append("v_max_u32 v21, v21, v22")
    R += [f"v_rcp_f32 v{lreg}, v{lreg}", f"v_mul_f32 v{lreg}, v{lreg}, v{vG+idx}"]
    return R
def oepi2(idx, lreg, pk):
    o = Oreg[idx]; R = []
    for ks in range(4):
        a = o+8*ks
        if pk: R += [f"v_pk_mul_f32 {vr(a+k,2)}, {vr(a+k,2)}, {vr(lreg&~1,2)} op_sel:[0,{lreg&1}] op_sel_hi:[1,{lreg&1}]" for k in range(0, 8, 2)]
        else: R += [f"v_mul_f32 v{a+k}, v{a+k}, v{lreg}" for k in range(8)]
        R += [f"v_cvt_pk_bf16_f32 v{a+k}, v{a+2*k}, v{a+2*k+1}" for k in range(4)]
        R.append(f"buffer_store_dwordx4 {vr(a,4)}, v0, s[76:79], s{sCT+idx} offen offset:{ks*1024}{Cfg.ctxsc}")
    return R
def dispatch(P, lab):
    for w in range(3): P(f"s_cmp_eq_u32 s{sW}, {w}"); P(f"s_cbranch_scc1 {lab}{w}", f'w{w}')
    P(f"s_branch {lab}3")
def attention(P):
    zx = [zmov(r) for r in LATEZ]
    qp = [f"ds_read_b128 {rr(aQ+64+4*i,4)}, v23 offset:{i*1024}" for i in range(8)]
    def peeled(vis): body(P, -1, SET1, vis, None, None, G=dma1(), pre=polld(vPL), extra=qp+zx, estep=1)
    P(f"s_cmp_eq_u32 s{sJ}, 0"); P("s_cbranch_scc1 LA_j0", 'j0')
    peeled(FULL)
    P(f"s_lshl_b32 s{sN}, s{sJ}, 1\ns_sub_u32 s{sN}, s{sN}, 1\nLA_l1:")
    body(P, 0, SET1, FULL, SET1, FULL, G=dma1()); body(P, 1, SET1, FULL, SET1, FULL, G=dma1(), loopctl=('LA_l1', 'LA_p2'))
    body(P, 0, SET1, FULL, SET1, FULL, G=dma1())
    dispatch(P, 'LA_ma')
    P("LA_j0:"); dispatch(P, 'LA_pm')
    P("LA_l2:")
    body(P, 0, SET2, FULL, SET2, FULL, G=dma2(), incK='16384', incV='16384'); body(P, 1, SET2, FULL, SET2, FULL, G=dma2(), incK='16384', incV='16384', loopctl=('LA_l2', None))
    body(P, 0, SET2, FULL, SET2, FULL, G=dma2(), incK=f's{sINC}', incV='16384')
    dispatch(P, 'LA_d1')
    for w in range(4):
        kh = w >> 1
        vis = lambda tl, i: [['f' if (t is None or 2*i+kt < t) else 't' if 2*i+kt == t else 'n' for t in tl] for kt in range(2)]
        v1 = [vis([w, 7-w, None, None], i) for i in range(4)]
        v2 = [vis([w ^ 2, 7-(w ^ 2), w, 7-w], i) for i in (kh, 3-kh)]
        P(f"LA_pm{w}:"); peeled(v1[0]); P(f"s_branch LA_b1{w}")
        P(f"LA_ma{w}:"); body(P, 1, SET1, v1[0], SET1, FULL, G=dma1())
        P(f"LA_b1{w}:"); body(P, 0, SET1, v1[1], SET1, v1[0], G=dma1())
        f3 = {0: lambda P: P(f"s_mov_b64 exec, 1\nv_mov_b32 v22, 0x10000\ns_lshl_b32 s{sT1}, s{sH}, 2\nbuffer_atomic_add v22, off, s[24:27], s{sT1} sc1\ns_mov_b64 exec, -1")} if w == 0 else {}
        body(P, 1, SET1, v1[2], SET1, v1[1], G=dma1(), incK=str(8192*(1+kh)), raw=f3)
        pollchk(P, vPL, 8, f'LA_p2{w}')
        body(P, 0, SET1, v1[3], SET1, v1[2], G=dma1(), incK=f's{sINC7}')
        z0 = [zmov(A(r)) for r in range(32)]
        P(f"s_cmp_eq_u32 s{sJ}, 7"); P(f"s_cbranch_scc1 LA_t7{w}", 'j7')
        body(P, 1, SET2, FULL, SET1, v1[3], G=dma1()+dmaX(w), incK='16384', incV=str(8192*(1+kh)), extra=z0)
        P(f"s_lshl_b32 s{sN}, s{sJ}, 1\ns_sub_u32 s{sN}, 13, s{sN}\ns_branch LA_l2")
        P(f"LA_t7{w}:"); body(P, 1, SET2, v2[0], SET1, v1[3], incV=str(8192*(1+kh)), extra=z0)
        P(f"s_branch LA_d2{w}")
        P(f"LA_d1{w}:"); body(P, 1, SET2, v2[0], SET2, FULL, incV='16384')
        P(f"LA_d2{w}:")
        def p3(P, w=w):
            pollchk(P, vPL, 16, f'LA_p3{w}')
            P(f"s_mov_b32 m0, {w*4096}\ns_lshl_b32 s{sT0}, s{sH}, 14\ns_add_u32 s{sT0}, s{sT0}, {WS_E+w*4096}")
            for q in range(4): P(f"buffer_load_dwordx4 v0, s[76:79], s{sT0} offen offset:{q*1024} sc1 lds", 'et')
        body(P, 0, SET2, v2[1], SET2, v2[0], kread=False, incV=f's{sINC}', allexp=True, vnext=True, bar=0, pre=polld(vPL))
        p3(P)
        lo = [f"v_accvgpr_read_b32 v24, {rr(aL)}", f"v_accvgpr_read_b32 v25, {rr(aL+4)}"]+oepi(0, 24, True)+oepi(1, 25, False)+oepi2(0, 24, False)+oepi2(1, 25, False)
        body(P, 1, None, None, SET2, v2[1], kread=False, head=False, vread=False, bar=None, extra=lo, extra_lo=0)
        if w < 3: P("s_branch LA_fin")
def final(P):
    P("LA_fin:"); stamp(P, 5)
    P(f"""s_lshl_b32 s34, s{sW}, 14
    v_add_u32 v26, s34, v0
    v_xor_b32 v27, 0x8000, v26
    v_lshrrev_b32 v28, 2, v0
    s_lshl_b32 s34, s{sW}, 9
    s_add_u32 s34, s34, {XA2}
    v_add_u32 v28, s34, v28
    v_xor_b32 v29, 1024, v28""")
    for i in range(16): P(f"ds_write_b128 v26, {rr(Oreg[4+(i>>3)]+4*(i&7),4)} offset:{KR+i*1024}")
    for t in range(2): P(f"ds_write_b32 v28, {rr(aL+16+4*t)} offset:{t*256}")
    P(f"""v_bfe_u32 v30, v0, 4, 4
    v_lshlrev_b32 v30, 2, v30
    s_lshl_b32 s34, s{sW}, 6
    s_add_u32 s35, s34, {XA2+2048}
    v_add_u32 v31, s35, v30
    s_sub_u32 s35, {XA2+2048+7*64}, s34
    v_add_u32 v30, s35, v30""")
    for op in ("v_sub_f32 v{d}, 1.0, v{g}", "v_cvt_pk_bf16_f32 v{d}, v{d}, v{d}", "v_lshlrev_b32 v{d}, 16, v{d}", "v_add_f32 v{d}, v{d}, v{d}"):
        for t in range(4): P(op.format(d=32+t, g=vG+t))
    for t in range(4): P(f"ds_write_b32 v{31-(t&1)}, v{32+t} offset:{(t>>1)*512}")
    w = Ins('WAITVM et, 0'); w.lg = 0; P(w); P('s_barrier')
    for t in range(2): P(f"ds_read_b32 v{32+t}, v29 offset:{t*256}")
    for i in range(12): P(f"ds_read_b128 {vr(vO+4*i,4)}, v27 offset:{KR+i*1024}")
    for t in range(2): P(f"v_accvgpr_read_b32 v{24+t}, {rr(aL+8+4*t)}\nv_add_f32 v{24+t}, v{24+t}, v{32+t}")
    P(oepi(2, 24, False)+oepi(3, 25, False))
    P(f"""v_cmp_lt_u32 vcc, {hex((40+30)<<23)}, v21
    v_mov_b32 v31, {XA2+3072}""")
    for i in range(12, 16): P(f"ds_read_b128 {vr(vO+4*i,4)}, v27 offset:{KR+i*1024}")
    P(f"""s_or_b32 s34, vcc_lo, vcc_hi
    v_mov_b32 v32, s34
    s_lshl_b32 s34, s{sW}, 2
    v_add_u32 v33, s34, v31
    ds_write_b32 v33, v32""")
    for t in range(2):
        for k in range(0, 32, 2): P(f"v_pk_add_f32 {vr(vO+64+32*t+k,2)}, {vr(vO+64+32*t+k,2)}, {vr(vO+32*t+k,2)}")
        P(oepi2(2+t, 24+t, True))
    P(f"""s_and_b32 s3, s{sW}, 1
    v_lshrrev_b32 v26, 1, v0
    s_lshl_b32 s34, s3, 9
    v_add_u32 v27, s34, v26
    ds_read_b64 v[72:73], v26""")
    for r in range(14): P(f"ds_read_b64 {vr(74+2*r,2)}, v27 offset:{r*512}")
    P(f"""s_lshr_b32 s35, s{sCH}, 1
    v_and_b32 v29, 0x78, v26
    s_lshl_b32 s34, s{sCH}, 9
    v_add_u32 v28, s34, v29
    s_cmp_eq_u32 s3, 0
    s_cselect_b64 exec, -1, 0
    s_waitcnt lgkmcnt(14)
    v_mov_b64 v[72:73], 0
    s_mov_b64 exec, -1""")
    for k in range(15):
        P(f"s_cmp_eq_u32 s35, {k}"); P("s_cbranch_scc1 LA_hd", 'hd')
        a = 74+4*k
        P(cmul_add(72, vC+4, a))
        P([f"v_pk_fma_f32 v[72:73], {vr(a,2)}, {vr(vC+4,2)}, {vr(a+2,2)} op_sel_hi:[1,0,1]", cmul_add(a, vC+4, 72)[1]])
        for r in (2*k+14, 2*k+15):
            if r < 30: P(f"ds_read_b64 {vr(74+2*r,2)}, v27 offset:{r*512}")
    P(f"""LA_hd:
    s_waitcnt lgkmcnt(0)
    s_lshl_b32 s34, s{sW}, 13
    s_add_u32 s34, s34, {VR}
    v_add_u32 v26, s34, v26
    v_add_u32 v29, s34, v29
    ds_write_b64 v26, v[72:73]""")
    for g in range(4): P(f"ds_read_b64 {vr(74+2*g,2)}, v29 offset:{g*128}")
    for g in range(3): P(f"ds_read_b64 {vr(82+2*g,2)}, v28 offset:{g*128}")
    P(f"""v_lshrrev_b32 v27, 8, v0
    v_lshlrev_b32 v27, 6, v27
    s_lshl_b32 s35, s{sW}, 8
    s_add_u32 s35, s35, {XA2+2048}
    v_add_u32 v27, s35, v27""")
    for k in range(4): P(f"ds_read_b128 {vr(88+4*k,4)}, v27 offset:{k*16}")
    for t in range(16): P(rdu(t, 104+2*t))
    for g in range(3): P(cmul_add(74+2*g, vC+2, 76+2*g))
    for g in range(3):
        P(f"s_lshl_b64 exec, -1, {16*(g+1)}"); P(cmul_add(80, vC+2, 82+2*g)); P(f"v_mov_b64 v[80:81], {vr(82+2*g,2)}")
    P("s_mov_b64 exec, -1")
    h = 80
    for t in range(16):
        u = 104+2*t; y = 136+2*t; s = 88+t
        P(cmul_add(h, vC, u)); h = u
        P(f"""v_pk_mul_f32 {vr(y,2)}, {vr(u,2)}, {vr(vC+6,2)} op_sel_hi:[1,0] neg_hi:[0,1]
        v_pk_fma_f32 {vr(y,2)}, {vr(u,2)}, {vr(vC+6,2)}, {vr(y,2)} op_sel:[1,1,0] op_sel_hi:[0,1,1] neg_lo:[0,1,0] neg_hi:[0,1,0]
        v_pk_mul_f32 {vr(y,2)}, {vr(y,2)}, {vr(s&~1,2)} op_sel:[0,{s&1}] op_sel_hi:[1,{s&1}]""")
        if t & 1: P(f"v_cvt_pk_bf16_f32 v{168+(t>>1)}, v{y-2}, v{y}\nv_cvt_pk_bf16_f32 v{176+(t>>1)}, v{y-1}, v{y+1}")
    P(f"""v_bfe_u32 v26, v0, 4, 4
    v_lshrrev_b32 v27, 8, v0
    v_mul_u32_u24 v28, 144, v26
    v_lshl_add_u32 v28, v27, 5, v28
    s_add_u32 s34, s34, 1024
    v_add_u32 v28, s34, v28
    v_lshrrev_b32 v29, 2, v26
    v_lshl_add_u32 v29, v27, 3, v29
    v_mul_u32_u24 v29, 144, v29
    v_and_b32 v26, 3, v26
    v_lshl_add_u32 v29, v26, 3, v29
    v_add_u32 v29, s34, v29""")
    for c in range(2):
        for k in range(2): P(f"ds_write_b128 v28, {vr(168+8*c+4*k,4)} offset:{c*16*144+k*16}")
    for T in range(4):
        for u in range(2): P(f"ds_read_b64_tr_b16 {vr(72+4*T+2*u,2)}, v29 offset:{u*4*144+T*32}")
    P(f"""s_mul_i32 s34, s{sQUAD}, {128*20480}
    s_lshl_b32 s35, s{sHQ}, 10
    s_add_u32 s34, s34, s35
    s_mul_i32 s35, s{sCH}, {4*20480}
    s_add_u32 s34, s34, s35""")
    for T in range(4):
        P(f"s_add_u32 s35, s34, {WS_CTX+16384+T*20480}\nbuffer_store_dwordx4 {vr(72+4*T,4)}, v0, s[76:79], s35 offen{Cfg.ctxsc}")
    P(f"""s_barrier
    ds_read_b128 v[32:35], v31
    s_waitcnt lgkmcnt(0)
    v_or3_b32 v32, v32, v33, v34
    v_or_b32 v32, v32, v35
    v_readfirstlane_b32 s34, v32
    s_cmp_eq_u32 s{sPASS}, 0
    s_cselect_b32 s34, s34, 0
    s_cmp_eq_u32 s34, 0""")
    P("s_cbranch_scc0 LA_redo", 'redo')
def redo(P):
    P(f"""LA_redo:
    s_mov_b32 s{sPASS}, 1
    s_waitcnt vmcnt(0)""")
    for t in range(2):
        for ks in range(4): P(f"buffer_load_dwordx4 {rr(aQ+16*t+4*ks,4)}, v0, s[76:79], s{sQS+t} offen offset:{ks*1024} sc1")
    P(f"""v_bfe_u32 v24, v0, 4, 4
    v_lshrrev_b32 v25, 8, v0
    v_lshlrev_b32 v25, 2, v25
    v_sub_u32 v24, v24, v25
    s_lshl_b32 s34, s{sJ}, 7
    s_lshl_b32 s35, s{sW}, 4
    s_add_u32 s33, s34, s35
    v_add_u32 v26, s33, v24
    s_sub_u32 s33, s34, s35
    s_add_u32 s33, s33, 112
    v_add_u32 v27, s33, v24
    s_sub_u32 s33, s35, s34
    s_add_u32 s33, s33, 1920
    v_add_u32 v28, s33, v24
    s_add_u32 s33, s34, s35
    s_sub_u32 s33, 2032, s33
    v_add_u32 v29, s33, v24
    v_mov_b32 v30, 0xff800000
    s_mov_b32 s34, 0""")
    for t in range(4): P(f"v_mov_b32 v{32+t}, v30")
    P("LA_mx:\ns_add_u32 s35, s34, 4096")
    for i in range(8): P(f"buffer_load_dwordx4 {rr(aK+4*i,4)}, v0, s[20:23], s{34+(i>>2)} offen offset:{(i&3)*1024} sc1")
    for kt in range(2):
        for ks in range(4):
            for qt in range(4): P(mfma(vS+16*kt+4*qt, aK+16*kt+4*ks, aQ+16*qt+4*ks, 'z' if ks == 0 else None))
    for kt in range(2):
        for qt in range(4):
            for i in range(4):
                s = vS+16*kt+4*qt+i
                P(f"v_cmp_le_i32 vcc, {16*kt+i}, v{26+qt}\nv_cndmask_b32 v{s}, v30, v{s}, vcc\nv_max_f32 v{32+qt}, v{32+qt}, v{s}")
    for qt in range(4): P(f"v_subrev_u32 v{26+qt}, 32, v{26+qt}")
    P(f"""s_add_u32 s34, s34, 16384
    s_cmp_lt_u32 s34, s22
    s_cbranch_scc1 LA_mx
    s_lshl_b32 s34, s{sW}, 10
    s_add_u32 s34, s34, {XA2+4096}
    v_add_u32 v24, s34, v0
    ds_write_b128 v24, v[32:35]
    v_and_b32 v25, 0xf0, v0
    v_add_u32 v25, s34, v25
    v_xor_b32 v26, 2048, v25
    s_waitcnt lgkmcnt(0)
    s_barrier""")
    for p in range(2):
        for g in range(4): P(f"ds_read_b128 {vr(vS+16*p+4*g,4)}, v{25+p} offset:{g*256}")
    for idx in range(6):
        b = vS+idx if idx < 4 else vS+16+idx-2
        P(f"v_max3_f32 v24, v{b}, v{b+4}, v{b+8}\nv_max_f32 v24, v24, v{b+12}")
        for k in range(4): P(f"v_sub_f32 v{vCq+4*idx+k}, 0, v24")
    for r in EARLYZ: P(zmov(r))
    P("s_barrier")
    for i in range(8): P(f"ds_write_b128 v23, {rr(aQ+64+4*i,4)} offset:{i*1024}")
    att_scalars(P)
    P("s_waitcnt lgkmcnt(0)\ns_barrier")
    for kb in ['K%d' % i for i in range(8)]+['V%d' % i for i in range(5)]:
        for g in akdma(kb[0], int(kb[1])): P(g, 'kv')
    P("s_waitcnt vmcnt(0)\ns_barrier\ns_branch LA_att")
```

```python
from ka2 import *
def outproj(P):
    ids(P, 'LB_end')
    bW, bT, bC, bR, bCR = 2, 4, 8, 10, 18; acc = lambda mt, t: 128+16*mt+4*t
    aB = lambda s, t: A(16*(s % 8)+4*t); aA = A(128)
    sS, sM, sCo = 86, 87, 88
    P(f"""v_and_b32 v36, 15, v3
    v_lshrrev_b32 v37, 4, v3
    v_lshrrev_b32 v40, 1, v36
    v_xor_b32 v40, v40, v37
    v_and_b32 v41, 1, v36
    v_lshlrev_b32 v41, 4, v41
    v_lshl_or_b32 v41, v37, 10, v41
    v_lshl_or_b32 v41, v40, 5, v41
    s_lshl_b32 s34, s{sW}, 13
    v_add_u32 v{bW}, s34, v41
    v_xor_b32 v41, 128, v{bW}
    v_add_u32 v{bW+1}, 3072, v41
    s_mul_i32 s35, s{sJ}, {8*20480}
    s_mul_i32 s32, s{sW}, 20480
    s_add_u32 s33, s35, s32
    v_add_u32 v{bT}, s33, v0
    s_sub_u32 s33, {127*20480}, s33
    v_add_u32 v{bT+3}, s33, v0
    s_sub_u32 s33, s35, s32
    s_add_u32 s33, s33, {7*20480}
    v_add_u32 v{bT+1}, s33, v0
    s_sub_u32 s33, {127*20480}, s33
    v_add_u32 v{bT+2}, s33, v0
    s_lshl_b32 s{sS}, s{sJ}, 1
    s_lshl_b32 s{sM}, s{sW}, 11
    s_lshl_b32 s34, s{sQUAD}, 19
    s_lshl_b32 s35, s{sHQ}, 8
    s_add_u32 s34, s34, s35
    s_mul_i32 s33, s{sQUAD}, {128*20480}
    s_add_u32 s33, s33, {WS_CTX}
    s_and_b32 s3, s{sW}, 1
    s_cmp_eq_u32 s3, 0
    s_waitcnt lgkmcnt(0)
    s_cselect_b32 s12, s58, s60
    s_cselect_b32 s13, s59, s61""")
    srd(P, 4, 46, 47, '0x7fd00', 's34'); srd(P, 8, 72, 73, 128*20480, 's33')
    P("s_mov_b32 s14, 0x80000\ns_mov_b32 s15, 0x20000")
    P(f"""v_lshlrev_b32 v{bC}, 4, v37
    v_lshl_or_b32 v{bC}, v36, 10, v{bC}
    s_lshr_b32 s33, s{sW}, 1
    s_lshl_b32 s{sCo}, s{sHQ}, 17
    s_lshl_b32 s34, s33, 16
    s_add_u32 s{sCo}, s{sCo}, s34
    s_lshl_b32 s34, s{sQUAD}, 7
    s_add_u32 s{sCo}, s{sCo}, s34
    s_lshl_b32 s{sCo+1}, s3, 14
    s_lshl_b32 s34, s33, 13
    s_add_u32 s{sCo+1}, s{sCo+1}, s34""")
    def fetch(s):
        G = []
        if s < 16:
            G += [[f"s_add_u32 m0, s{sM}, {s*8192}"], [f"s_lshl_b32 s{sT0}, s{sS}, 15"], [f"s_lshl_b32 s{sT1}, s{sS}, 10"]]
            G += [[f"buffer_load_dwordx4 v{bW+q}, s[4:7], s{sT0} offen offset:{q*1024} lds"] for q in range(2)]
            G += [[f"s_add_u32 s{sS}, s{sS}, 1"], [f"s_and_b32 s{sS}, s{sS}, 15"]]
        else:
            if s % 2 == 0:
                hp = (s-16) >> 1
                for k in range(4):
                    G += [[f"s_add_u32 m0, s{sCo+1}, {131072+k*2048+hp*1024}"], [f"s_add_u32 s{sT0}, s{sCo}, {k*16384+hp*64}"], [f"buffer_load_dwordx4 v{bC}, s[12:15], s{sT0} offen lds"]]
            G += [[f"s_mov_b32 s{sT1}, {s*1024}"]]
        G += [[f"buffer_load_dwordx4 {rr(aB(s,t),4)}, v{bT+t}, s[8:11], s{sT1} offen{Cfg.ctxsc}"] for t in range(4)]
        return G
    LA = 7
    for s in range(LA):
        if s: P('EPOCH kv')
        for g in fetch(s): P(g, 'kv')
    P(f"""v_lshrrev_b32 v44, 2, v36
    v_lshl_add_u32 v45, v37, 2, v44
    v_and_b32 v46, 7, v45
    v_lshlrev_b32 v46, 5, v46
    v_lshl_or_b32 v46, v45, 8, v46
    v_and_b32 v47, 3, v36
    v_lshl_or_b32 v{bR}, v47, 3, v46""")
    for d in range(1, 8): P(f"v_xor_b32 v{bR+d}, {d*32}, v{bR}")
    P(f"""v_and_b32 v44, 511, v0
    v_lshrrev_b32 v45, 9, v0
    v_lshl_or_b32 v44, v45, 14, v44
    v_add_u32 v{bCR}, 131072, v44
    s_lshl_b32 s34, s{sQUAD}, 21
    s_lshl_b32 s35, s{sHQ}, 12
    s_add_u32 s34, s34, s35
    s_add_u32 s34, s34, {WS_PART}""")
    srd(P, 16, 72, 73, '0x200000', 's34')
    P(f"""s_lshl_b32 s35, s{sJ}, 17
    s_lshl_b32 s32, s{sW}, 14
    s_add_u32 s92, s35, s32
    s_sub_u32 s95, {127*16384}, s92
    s_sub_u32 s93, s35, s32
    s_add_u32 s93, s93, {7*16384}
    s_sub_u32 s94, {127*16384}, s93""")
    def areads(s, mt):
        if s < 16: return [f"ds_read_b64_tr_b16 {rr(aA+4*mt+2*u,2)}, v{bR+mt} offset:{(s%8)*8192+u*4096}" for u in range(2)]
        hh = s-16
        return [f"ds_read_b128 {rr(aA+4*mt,4)}, v{bCR} offset:{(mt*2+(hh>>1))*1024+(hh&1)*512}"]
    P(f'WAITVM kv, {LA-1}\ns_barrier')
    for mt in range(8): P(areads(0, mt))
    for s in range(20):
        mf = [mfma(acc(mt, t), aA+4*mt, aB(s, t), 'z' if s == 0 else None) for mt in range(8) for t in range(4)]
        S = Sched(32)
        if s < 19:
            S.put(0, [Ins('EPOCH kv'), Ins(f'WAITVM kv, {LA-1}'), 's_barrier'])
            for mt in range(8):
                if s == 7: S.put(max(4*mt+1, 1), f"v_add_u32 v{bR+mt}, 0x10000, v{bR+mt}")
                S.stream(areads(s+1, mt), 4*mt+3, step=1)
        if s+LA < 20: place_dma(S, fetch(s+LA), 1, 2)
        if s == 19:
            g = 0
            for a in range(4):
                for t in range(4):
                    f, s2 = acc(2*a, t), acc(2*a+1, t)
                    it = [f"v_cvt_pk_bf16_f32 v{f}, v{f}, v{f+1}", f"v_cvt_pk_bf16_f32 v{f+1}, v{f+2}, v{f+3}", f"v_cvt_pk_bf16_f32 v{f+2}, v{s2}, v{s2+1}", f"v_cvt_pk_bf16_f32 v{f+3}, v{s2+2}, v{s2+3}"]
                    g = S.stream(it, max(g, 8*a+4+t+4))[-1]
                    g = S.place(f"buffer_store_dwordx4 {vr(f,4)}, v0, s[16:19], s{92+t} offen offset:{a*1024}", g+1)
        S.emit(P, mf)
    P("LB_end:\ns_endpgm")
def reduce(P):
    P(f"""s_cmp_ge_u32 s2, 512
    s_cbranch_scc1 LC_end
    s_load_dwordx2 s[36:37], s[0:1], 0
    s_load_dwordx2 s[38:39], s[0:1], 112
    s_load_dwordx2 s[40:41], s[0:1], 128
    s_load_dwordx2 s[42:43], s[0:1], 144
    v_lshlrev_b32 v1, 4, v0
    s_lshl_b32 s3, s2, 12
    v_add_u32 v1, s3, v1
    v_and_b32 v2, 15, v0
    s_lshr_b32 s4, s2, 2
    s_lshl_b32 s4, s4, 4
    v_add_u32 v2, s4, v2
    v_lshrrev_b32 v3, 6, v0
    s_and_b32 s5, s2, 3
    s_lshl_b32 s5, s5, 2
    v_add_u32 v3, s5, v3
    v_bfe_u32 v4, v0, 4, 2
    v_lshlrev_b32 v4, 2, v4
    v_lshl_add_u32 v3, v3, 5, v4
    v_lshl_add_u32 v4, v2, 9, v3
    v_lshlrev_b32 v5, 1, v4
    v_lshlrev_b32 v4, 2, v4
    v_lshlrev_b32 v3, 1, v3
    v_lshlrev_b32 v2, 2, v2
    s_waitcnt lgkmcnt(0)""")
    srd(P, 8, 42, 43, '0x10000000'); srd(P, 12, 36, 37, '0x200000'); srd(P, 16, 38, 39, 1024); srd(P, 20, 40, 41, '0x400000')
    P(f"s_mov_b32 s6, {WS_G}\nbuffer_load_dword v6, v2, s[8:11], s6 offen")
    for u in range(2): P(f"buffer_load_dwordx2 {vr(8+2*u,2)}, v5, s[12:15], 0 offen offset:{u*32}\nbuffer_load_dwordx2 {vr(12+2*u,2)}, v3, s[16:19], 0 offen offset:{u*32}")
    for q in range(8): P(f"s_mov_b32 s6, {WS_PART+q*0x200000}\nbuffer_load_dwordx4 {vr(16+4*q,4)}, v1, s[8:11], s6 offen")
    P("v_sub_f32 v6, 1.0, v6\nv_cvt_pk_bf16_f32 v6, v6, v6\nv_lshlrev_b32 v6, 16, v6")
    for k in range(4):
        P(f"""v_lshlrev_b32 v56, 16, v{8+k}
        v_and_b32 v57, 0xffff0000, v{8+k}
        v_lshlrev_b32 v58, 16, v{12+k}
        v_and_b32 v59, 0xffff0000, v{12+k}
        v_mul_f32 v56, v56, v58
        v_mul_f32 v57, v57, v59
        v_cvt_pk_bf16_f32 v56, v56, v57
        v_and_b32 v57, 0xffff0000, v56
        v_lshlrev_b32 v56, 16, v56
        v_mul_f32 v{48+2*k}, v56, v6
        v_mul_f32 v{49+2*k}, v57, v6""")
    for q in range(8):
        for k in range(4):
            P(f"""v_lshlrev_b32 v56, 16, v{16+4*q+k}
            v_and_b32 v57, 0xffff0000, v{16+4*q+k}
            v_pk_add_f32 {vr(48+2*k,2)}, {vr(48+2*k,2)}, v[56:57]""")
    for u in range(2): P(f"buffer_store_dwordx4 {vr(48+4*u,4)}, v4, s[20:23], 0 offen offset:{u*64}")
    P("LC_end:\ns_endpgm")
```

```python
import sys, os
from kb import *
NAME = "gated_mix__compressed_kv_cla__ssm_conv_s5__prompt"
def desc(name, nv, acc):
    return f""".p2align 6
.amdhsa_kernel {name}
.amdhsa_next_free_vgpr {nv}
.amdhsa_next_free_sgpr 102
.amdhsa_accum_offset {acc}
.amdhsa_group_segment_fixed_size 0
.amdhsa_kernarg_size 152
.amdhsa_user_sgpr_count 2
.amdhsa_user_sgpr_kernarg_segment_ptr 1
.amdhsa_system_sgpr_workgroup_id_x 1
.end_amdhsa_kernel
"""
def head(P, n): P(f".globl {n}\n.p2align 8\n.type {n},@function\n{n}:")
def tsflush(P):
    if not Cfg.ts: return
    P(f"""s_lshl_b32 s34, s2, 2
    s_add_u32 s34, s34, s{sW}
    s_lshl_b32 s34, s34, 7
    s_add_u32 s34, s34, {WS_TS}
    v_lshrrev_b32 v1, 2, v0
    v_accvgpr_read_b32 v2, a190
    s_mov_b64 exec, 0xffffffff
    buffer_store_dword v2, v1, s[76:79], s34 offen""")
def build(out, ts=False):
    Cfg.ts = ts; Cfg.ctxsc = ''
    P = Prog(); KA = NAME+"_kernel"
    head(P, KA)
    setup(P)
    stamp(P, 1)
    P(f"s_cmp_ge_u32 s{sW}, 2"); P("s_cbranch_scc1 LA_v", 'role')
    kv(P, 0); P("s_branch LA_q\nLA_end:\ns_endpgm\nLA_v:"); kv(P, 1); P("LA_q:")
    stamp(P, 2)
    qphase(P, EARLYZ); stamp(P, 3); qepi(P); stamp(P, 4); attention(P); final(P)
    stamp(P, 6); tsflush(P)
    P("s_endpgm"); redo(P)
    head(P, "oproj_kernel"); outproj(P)
    head(P, "red_kernel"); reduce(P)
    jobs = []
    for w in range(4):
        for jj in (0, 3, 7):
            for var in range(2):
                pol = {'role': [int(w >= 2)], 'w0': [int(w == 0)], 'w1': [int(w == 1)], 'w2': [int(w == 2)], 'j0': [int(jj == 0)], 'j7': [int(jj == 7)],
                       'pollok': [1] if var == 0 else [0, 1], 'LA_f1': [int(w != 0)], 'LA_f2': [int(w != 0)], 'ng': [var], 'hd': [0] if var == 0 else [1], 'redo': [0] if var == 0 else [1, 0],
                       'LA_l1': [1, 1, 0] if var == 0 else [0], 'LA_l2': [1, 1, 0] if var == 0 else [0]}
                jobs.append((KA, pol))
    jobs += [("oproj_kernel", {}), ("red_kernel", {})]
    P.finalize(jobs)
    ref = open('cdna_kernels/'+NAME+'.s.ref').read().split('\n')
    hdr = [l for l in ref if l.startswith(';') and '@launch' not in l and not l.startswith('; Override') and not l.startswith('; grid=')]
    hdr += [f"; @launch kernel={KA} grid=(256,1,1) block=(256,1,1) lds=163840", "; @launch kernel=oproj_kernel grid=(256,1,1) block=(256,1,1) lds=163840", "; @launch kernel=red_kernel grid=(512,1,1) block=(256,1,1) lds=0"]
    s = '\n'.join(hdr)+'\n.amdgcn_target "amdgcn-amd-amdhsa--gfx950"\n.text\n'+P.text()+'.section .rodata,"a"\n'+desc(KA, 512, 256)+desc("oproj_kernel", 512, 256)+desc("red_kernel", 64, 64)
    open(out, 'w').write(s)
    open(out+'.log', 'w').write('\n'.join(P.log))
    print(out, len(s), 'bytes', len(P.L), 'ins', len(P.log), 'log')
if __name__ == '__main__':
    build('k.s'); build('kts.s', True)
```

```python
from asmlib import *
MF = 'v_mfma_f32_16x16x32_bf16'
def mfma(d, a, b, c=None):
    return f"{MF} {rr(d,4)}, {rr(a,4)}, {rr(b,4)}, {'0' if c == 'z' else rr(d if c is None else c,4)}"
A = lambda n: 256+n
WB = 98304
KR, VR = 16384, 81920
WS_CTX, WS_E, WS_G, WS_TS, WS_QS, WS_PART = 0x2000000, 0x3400000, 0x3500000, 0x3600000, 0x3800000, 0x4000000
sW, sH, sJ, sROT, sQUAD, sHQ = 80, 81, 82, 83, 84, 85
sWK, sAK, sT0, sT1 = 86, 87, 74, 75
sST = 88
sKF, sPFL = 40, 41
sPF, sFL = 38, 42
sMW, sMA, sXL, sXH, sGK, sMQ = 96, 97, 98, 99, 100, 101
vL16 = 0; vWR = 2; vAR = 10; vWD = 14; vAD = 18; vAX = 22; vBD = 24; vGD = 25; vXR = 26; vXP = 28; vBR = 32; vWQ = 33; vT = 1; vT2 = 35
F = [36+4*n for n in range(32)]
agp = [1, 3, 5, 7, 9, 11, 13, 14, 15]
S2 = []; _v = 164; _a = 0
for n in range(32):
    if n in agp: S2.append(A(_a)); _a += 4
    else: S2.append(_v); _v += 4
KVB = [A(36), A(100)]
qW, qX, qXP, qB, qZ, qG, qBU, qCONST = A(36), [A(68), A(100)], [A(84), A(116)], [A(164), A(172)], A(132), A(240), A(192), A(180)
NPRE = 9
QA = [F[n] for n in range(NPRE)] + [S2[n] for n in range(32) if n not in agp]
class Cfg: ts = False; safe = False
nts = [0]
def stamp(P, i):
    if not Cfg.ts: return
    if i >= 5:
        if i == 5: P("v_accvgpr_read_b32 v39, a190")
        P(f"s_memrealtime s[48:49]\ns_waitcnt lgkmcnt(0)\nv_writelane_b32 v39, s48, {i}"); return
    P(f"""s_memrealtime s[48:49]
    v_accvgpr_write_b32 a191, v1
    v_accvgpr_read_b32 v1, a190
    s_waitcnt lgkmcnt(0)
    v_writelane_b32 v1, s48, {i}
    v_accvgpr_write_b32 a190, v1
    v_accvgpr_read_b32 v1, a191""")
def srd(P, d, lo, hi, num, add=None):
    if add is None: P(f"s_mov_b32 s{d}, s{lo}\ns_mov_b32 s{d+1}, s{hi}")
    else: P(f"s_add_u32 s{d}, s{lo}, {add}\ns_addc_u32 s{d+1}, s{hi}, 0")
    P(f"s_mov_b32 s{d+2}, {num}\ns_mov_b32 s{d+3}, 0x20000")
def ids(P, endlab):
    P(f"""s_cmp_ge_u32 s2, 256
    s_cbranch_scc1 {endlab}
    s_load_dwordx16 s[36:51], s[0:1], 0
    s_load_dwordx16 s[52:67], s[0:1], 64
    s_load_dwordx4 s[68:71], s[0:1], 128
    s_load_dwordx2 s[72:73], s[0:1], 144
    s_getpc_b64 s[4:5]
    LA_pc:
    s_lshr_b32 s3, s2, 3
    s_lshl_b32 s3, s3, 12
    v_lshl_add_u32 v4, v0, 4, s3
    v_min_u32 v4, LA_last-LA_pc, v4
    global_load_dword v35, v4, s[4:5]
    v_lshrrev_b32 v1, 6, v0
    v_and_b32 v3, 63, v0
    v_readfirstlane_b32 s{sW}, v1
    s_and_b32 s{sQUAD}, s2, 7
    s_bfe_u32 s{sHQ}, s2, 0x20003
    s_lshr_b32 s{sJ}, s2, 5
    s_lshl_b32 s{sH}, s{sQUAD}, 2
    s_add_u32 s{sH}, s{sH}, s{sHQ}
    v_lshlrev_b32 v0, 4, v3""")
def dmaW(u, icode):
    slot = u % 4; G = []
    adv = [f"s_add_u32 s{sWK}, s{sWK}, 0x40000", f"s_and_b32 s{sWK}, s{sWK}, 0x3c0000"]
    if u < 16 or (u < 20 and icode == 0):
        G.append([f"s_add_u32 m0, s{sMW}, {slot*16384}"])
        for q in range(4): G.append([f"buffer_load_dwordx4 v{vWD+q}, {sr(12 if u < 16 else 16,4)}, s{sWK} offen offset:{q*1024} lds"])
    elif u < 20:
        i = u-16
        for a in range(4):
            G.append([f"s_add_u32 m0, s{sMQ}, {slot*16384+a*2048}"])
            G.append([f"s_add_u32 s{sT1}, s{sROT}, {(4*i+a)*64}"]); G.append([f"s_and_b32 s{sT1}, s{sT1}, 1023"])
            G.append([f"buffer_load_dwordx4 v{vBD}, s[28:31], s{sT1} offen lds"])
    else:
        G.append([f"s_add_u32 m0, s{sMQ}, {slot*16384}"])
        for q in range(2): G.append([f"buffer_load_dwordx4 v{vWQ+q}, s[16:19], s{sWK} offen offset:{q*1024} lds"])
    G += [[adv[0]], [adv[1]]]
    return G
def dmaA(sg, hi):
    G = [[f"s_add_u32 m0, s{sMA}, {(sg%3)*16384+hi*4096}"]]
    if sg < 8: G.append([f"s_add_u32 s{sT0}, s{sAK}, {hi*32768}"])
    else: G.append([f"s_add_u32 s{sT0}, s{sAK}, s{sXH if hi else sXL}"])
    for q in range(4):
        v = vAD+q if (sg < 8 or q < 2) else vAX+q-2
        G.append([f"buffer_load_dwordx4 v{v}, {sr(4 if sg < 8 else 8,4)}, s{sT0} offen offset:{q*1024} lds"])
    if hi: G += [[f"s_add_u32 s{sAK}, s{sAK}, 128"], [f"s_and_b32 s{sAK}, s{sAK}, 1023"]]
    return G
def gateld(u):
    return [[f"buffer_load_dwordx4 {rr(qG+4*(u%4),4)}, v{vGD}, s[32:35], s{sGK} offen"], [f"s_add_u32 s{sGK}, s{sGK}, 64"], [f"s_and_b32 s{sGK}, s{sGK}, 1023"]]
def step_dma(u, icode):
    G = []
    if u+4 < 32: G += dmaW(u+4, icode)
    sg, hi = ((u >> 1)+3, 0) if u & 1 else ((u >> 1)+2, 1)
    if sg < 16: G += dmaA(sg, hi)
    if 16 <= u+3 < 32: G += gateld(u+3)
    return G
def place_dma(S, G, lo, step=3, hi=None):
    g = lo; lastv = lo-step
    for it in G:
        l = S.mk(it, 'kv'); isv = l[0].kind in VMK
        p = S.place(l, max(g+1, lastv+step) if isv else g, hi)
        g = p+(1 if isv else 0)
        if isv: lastv = p
    return g
def wreads(dst, u, iw):
    return [f"ds_read_b64_tr_b16 {rr(dst+2*x,2)}, v{vWR+iw} offset:{(u%4)*16384+x*1024}" for x in range(2)]
def kvreads(u):
    b = KVB[u & 1]; R = []; uu = u & 1; st = ((u >> 1) % 3)*16384
    for i in range(8):
        R.append(f"ds_read_b128 {rr(b+32+4*i,4)}, v{vAR+2*uu+(i>>2)} offset:{st+i*2048}")
        R += wreads(b+4*i, u, i)
    return R
def sync(S, g=0):
    w = Ins('WAITVM kv, 3'); w.lg = 0
    S.put(g, [Ins('EPOCH kv'), w, 's_barrier'])
def tiles(role, n):
    pr, fr = n >> 3, n & 7
    if role == 0: ic = 2*pr+(fr >> 2); ks = fr & 3; return [(2*ks, ic), (2*ks+1, ic)]
    return [(fr, 2*pr), (fr, 2*pr+1)]
def kvstore(n): return f"buffer_store_dwordx4 {vr(F[n],4)}, v{vL16}, s[20:23], s{sST+(n>>2)} offen offset:{(n&3)*1024} sc1"
def qreads_misc(u):
    p = u & 1; st = ((u >> 1) % 3)*16384; R = []
    for t in range(4): R.append(f"ds_read_b128 {rr(qX[p]+4*t,4)}, v{vXR+p} offset:{st+t*2048}")
    for t in range(4): R.append(f"ds_read_b128 {rr(qXP[p]+4*t,4)}, v{vXP+((2*p)^t)} offset:{st+t*512}")
    i, a = (u-16) >> 2, (u-16) & 3
    for c in range(2): R.append(f"ds_read_b128 {rr(qB[p]+4*c,4)}, v{vBR} offset:{i*16384+a*2048+c*1024}")
    return R
def setup(P):
    ids(P, 'LA_end')
    P(f"""v_and_b32 v36, 15, v3
    v_lshrrev_b32 v37, 4, v3
    v_and_b32 v38, 7, v3
    v_lshrrev_b32 v39, 3, v3
    s_lshl_b32 s{sROT}, s{sHQ}, 1
    s_add_u32 s{sROT}, s{sROT}, s{sJ}
    s_and_b32 s{sROT}, s{sROT}, 7
    s_lshl_b32 s{sWK}, s{sROT}, 19
    s_lshl_b32 s{sROT}, s{sROT}, 7
    s_mov_b32 s{sAK}, s{sROT}
    s_mov_b32 s{sGK}, s{sROT}
    s_and_b32 s3, s{sW}, 1
    s_lshr_b32 s33, s{sW}, 1
    s_lshl_b32 s{sMW}, s{sW}, 12
    s_add_u32 s{sMW}, s{sMW}, {WB}
    s_mul_i32 s{sMA}, s33, 49152
    s_lshl_b32 s32, s3, 13
    s_add_u32 s{sMA}, s{sMA}, s32""")
    P(f"""v_lshrrev_b32 v40, 1, v36
    v_xor_b32 v40, v40, v37
    v_and_b32 v41, 1, v36
    v_lshlrev_b32 v41, 4, v41
    v_lshl_or_b32 v41, v37, 13, v41
    v_lshl_or_b32 v42, v40, 5, v41
    s_lshl_b32 s32, s3, 17
    v_add_u32 v{vWD}, s32, v42
    v_add_u32 v{vWD+1}, 31744, v{vWD}
    v_xor_b32 v43, 128, v{vWD}
    v_add_u32 v{vWD+2}, {2*31744}, v43
    v_add_u32 v{vWD+3}, {3*31744}, v43""")
    P(f"""v_lshrrev_b32 v43, 1, v39
    v_xor_b32 v43, v43, v38
    s_lshl_b32 s32, s{sW}, 1
    v_xor_b32 v43, s32, v43
    v_lshlrev_b32 v43, 4, v43
    v_lshl_or_b32 v{vAD}, v39, 10, v43
    v_xor_b32 v43, 64, v{vAD}
    v_add_u32 v{vAD+1}, 7168, v43
    v_add_u32 v{vAD+2}, {2*7168}, v{vAD}
    v_add_u32 v{vAD+3}, {3*7168}, v43
    s_lshl_b32 s34, s{sJ}, 17
    s_lshl_b32 s35, s3, 20
    s_add_u32 s34, s34, s35
    s_lshl_b32 s35, s33, 16
    s_add_u32 s34, s34, s35
    s_lshl_b32 s35, s{sH}, 8
    s_cmp_eq_u32 s33, 0
    s_waitcnt lgkmcnt(0)
    s_cselect_b32 s12, s42, s44
    s_cselect_b32 s13, s43, s45""")
    stamp(P, 0)
    srd(P, 12, 12, 13, '0x3fe100', 's35')
    srd(P, 4, 38, 39, 65536, 's34')
    seq = [dmaW(0, 0)+dmaA(0, 0)+dmaA(0, 1), dmaW(1, 0), dmaW(2, 0)+dmaA(1, 0)+dmaA(1, 1), dmaW(3, 0)+dmaA(2, 0)]
    for i, G in enumerate(seq):
        if i: P('EPOCH kv')
        for g in G: P(g, 'kv')
    srd(P, 16, 40, 41, '0x3fe100', 's35')
    P(f"s_lshl_b32 s34, s{sW}, 14"); srd(P, 8, 36, 37, 0, 's34'); P("s_sub_u32 s10, 0x200000, s34")
    P(f"s_lshl_b32 s34, s{sH}, 20"); srd(P, 20, 72, 73, '0x100000', 's34')
    srd(P, 24, 70, 71, 256); srd(P, 76, 72, 73, '0x10000000')
    P(f"""s_lshl_b32 s34, s{sH}, 14
    s_cmp_eq_u32 s3, 0
    s_cselect_b32 s28, s54, s56
    s_cselect_b32 s29, s55, s57""")
    srd(P, 28, 28, 29, 16384, 's34')
    P(f"""s_lshl_b32 s{sXL}, s{sJ}, 17
    s_sub_u32 s{sXH}, 0x1e0000, s{sXL}
    s_lshl_b32 s34, s{sJ}, 16
    s_lshl_b32 s35, s3, 15
    s_add_u32 s34, s34, s35
    s_lshl_b32 s35, s33, 13
    s_add_u32 s{sST}, s34, s35""")
    for i in range(1, 8): P(f"s_add_u32 s{sST+i}, s{sST}, {((i>>1)&1)*16384+(i>>2)*524288+(i&1)*4096}")
    P(f"""v_lshrrev_b32 v44, 2, v36
    v_and_b32 v45, 1, v37
    v_lshl_or_b32 v45, v45, 2, v44
    v_lshl_add_u32 v46, v37, 3, v44
    v_lshlrev_b32 v46, 8, v46
    v_lshl_or_b32 v46, v45, 5, v46
    v_and_b32 v47, 3, v36
    v_lshl_or_b32 v46, v47, 3, v46
    s_lshl_b32 s34, s33, 13
    s_add_u32 s34, s34, {WB}
    v_add_u32 v{vWR}, s34, v46""")
    for d in range(1, 8): P(f"v_xor_b32 v{vWR+d}, {d*32}, v{vWR}")
    P(f"""v_lshlrev_b32 v46, 4, v40
    v_lshl_or_b32 v46, v36, 7, v46
    s_mul_i32 s34, s3, {49152+64}
    s_lshl_b32 s35, s3, 6
    v_xor_b32 v45, s35, v46
    s_mul_i32 s34, s3, 49152
    v_add_u32 v{vAR}, s34, v45
    v_xor_b32 v{vAR+1}, 32, v{vAR}
    v_xor_b32 v{vAR+2}, 64, v{vAR}
    v_xor_b32 v{vAR+3}, 96, v{vAR}
    s_lshl_b32 s35, s{sW}, 5
    v_xor_b32 v45, s35, v46
    v_add_u32 v{vXR}, s{sMA}, v45
    v_xor_b32 v{vXR+1}, 64, v{vXR}""")
    P(f"""s_mul_i32 s34, s3, 3
    v_xor_b32 v44, s34, v44
    v_lshrrev_b32 v45, 1, v47
    v_xor_b32 v45, v45, v37
    v_lshlrev_b32 v46, 1, v44
    v_xor_b32 v45, v45, v46
    v_lshlrev_b32 v45, 4, v45
    v_lshl_or_b32 v45, v47, 7, v45
    v_and_b32 v46, 1, v44
    v_lshl_or_b32 v45, v46, 13, v45
    v_lshrrev_b32 v46, 1, v44
    v_mul_u32_u24 v46, 49152, v46
    s_lshl_b32 s34, s{sW}, 11
    v_add3_u32 v{vXP}, v45, v46, s34
    v_xor_b32 v{vXP+1}, 32, v{vXP}
    v_xor_b32 v{vXP+2}, 64, v{vXP}
    v_xor_b32 v{vXP+3}, 96, v{vXP}
    v_add_u32 v{vBR}, {WB+8192}, v{vL16}
    v_lshlrev_b32 v{vGD}, 4, v37
    v_lshl_or_b32 v{vBD}, v36, 10, v{vGD}
    s_lshl_b32 s34, s{sW}, 15
    s_sub_u32 s34, 0x18000, s34
    v_add_u32 v{vAX}, s34, v{vAD+2}
    v_add_u32 v{vAX+1}, s34, v{vAD+3}
    s_lshl_b32 s34, s3, 7
    v_xor_b32 v45, s34, v42
    s_lshl_b32 s34, s{sW}, 16
    v_add_u32 v{vWQ}, s34, v45
    v_add_u32 v{vWQ+1}, 31744, v{vWQ}
    s_lshl_b32 s{sMQ}, s3, 10
    s_add_u32 s{sMQ}, s{sMQ}, {WB+8192}""")
    srd(P, 32, 66, 67, 1024)
    P(f"""s_lshl_b32 s{sPF}, s2, 2
    s_add_u32 s{sPF}, s{sPF}, s{sW}
    s_lshl_b32 s{sPF}, s{sPF}, 14
    s_add_u32 s{sPF}, s{sPF}, {WS_PART}
    s_lshl_b32 s{sFL}, s{sQUAD}, 3
    s_add_u32 s{sFL}, s{sFL}, s{sJ}
    s_lshl_b32 s{sFL}, s{sFL}, 7
    s_add_u32 s{sFL}, s{sFL}, {WS_G}
    s_lshl2_add_u32 s{sFL+1}, s{sW}, s{sHQ}
    s_lshl2_add_u32 s{sFL+1}, s{sFL+1}, s{sFL}
    s_lshl2_add_u32 s{sFL+2}, s{sHQ}, s{sW}
    s_lshl2_add_u32 s{sFL+2}, s{sFL+2}, s{sFL}
    s_lshl_b32 s{sKF}, s{sH}, 7
    s_add_u32 s{sKF}, s{sKF}, {WS_G+0x4000}
    s_lshr_b32 s{sPFL}, s2, 3
    s_lshl_b32 s{sPFL}, s{sPFL}, 7
    s_add_u32 s{sPFL}, s{sPFL}, {WS_G+0x8000}
    s_lshl3_add_u32 s{sT0}, s{sW}, s{sJ}
    s_lshl2_add_u32 s{sT0}, s{sT0}, s{sKF}
    s_lshl2_add_u32 s{sT1}, s{sQUAD}, s{sPFL}
    s_cmp_eq_u32 s{sW}, 3
    s_cselect_b32 s{sT0}, s{sT1}, s{sT0}
    v_mov_b32 v1, 0
    s_mov_b64 exec, 1""")
    P(f"buffer_store_dword v1, off, s[76:79], s{sT0} sc1", 'kv')
    P(f"buffer_store_dword v1, off, s[76:79], s{sFL+1} sc1\nbuffer_store_dword v1, off, s[76:79], s{sFL+2} offset:64 sc1", 'kv')
    P("s_mov_b64 exec, -1")
    for k in range(4): P(f"v_accvgpr_write_b32 a{164+k}, -1")
    if Cfg.safe: P("s_mov_b32 s45, 0")
    P('WAITVM kv, 3\ns_barrier')
    for r in kvreads(0): P(r)
vC = 10
def ssm_loads():
    return [[f"s_lshl_b32 s{sT1}, s{sH}, 5"], ["v_bfe_u32 v72, v0, 4, 4"], [f"v_lshl_add_u32 v72, v72, 1, s{sT1}"],
            ["global_load_ushort v73, v72, s[50:51]"], ["global_load_ushort v74, v72, s[52:53]"], ["global_load_ushort v75, v72, s[62:63]"]]
def ssm_consts():
    t = f"""v_lshlrev_b32 v73, 16, v73
    v_lshlrev_b32 v74, 16, v74
    v_lshlrev_b32 v75, 16, v75
    v_mul_f32 v75, 0x3fb8aa3b, v75
    v_exp_f32 v75, v75
    v_mul_f32 v80, v73, v73
    v_cvt_pk_bf16_f32 v75, v75, v75
    v_lshlrev_b32 v75, 16, v75
    v_mul_f32 v76, v75, v73
    v_mul_f32 v77, v75, v74
    v_mul_f32 v76, 0x3fb8aa3b, v76
    v_mul_f32 v77, 0.15915494, v77
    v_exp_f32 v76, v76
    v_rndne_f32 v78, v77
    v_sub_f32 v77, v77, v78
    v_cos_f32 v78, v77
    v_sin_f32 v79, v77
    v_fmac_f32 v80, v74, v74
    v_rcp_f32 v80, v80
    v_mul_f32 v10, v78, v76
    v_mul_f32 v11, v79, v76
    v_add_f32 v81, -1.0, v10
    v_mul_f32 v16, v81, v73
    v_fmac_f32 v16, v11, v74
    v_mul_f32 v17, v11, v73
    v_fma_f32 v17, -v81, v74, v17
    v_mul_f32 v16, v16, v80
    v_mul_f32 v17, v17, v80""".split('\n')
    for i in range(6):
        a, b = (10 if i == 0 else 12 if i <= 4 else 14), (12 if i <= 3 else 14)
        t += [f"v_mul_f32 v81, v{a+1}, v{a+1}", f"v_mul_f32 v{b+1}, v{a}, v{a+1}", f"v_fma_f32 v{b}, v{a}, v{a}, -v81", f"v_add_f32 v{b+1}, v{b+1}, v{b+1}"]
    return t
def kv(P, role):
    acc = {}
    for n in range(32):
        t = tiles(role, n); acc[t[0]] = F[n]; acc[t[1]] = S2[n]
    def m(u, iw, ic):
        b = KVB[u & 1]; w, c = b+4*iw, b+32+4*ic
        return mfma(acc[(iw, ic)], w if role == 0 else c, c if role == 0 else w, 'z' if u == 0 else None)
    for u in range(14):
        S = Sched(64); sync(S)
        if u == 3 and role == 0: S.raw[0] = lambda P: flagset(P, -1, 'LA_f0')
        S.stream(kvreads(u+1), 1, step=2)
        place_dma(S, step_dma(u, role)+[[f"buffer_store_dwordx4 a[164:167], v0, s[76:79], s{sPF} offen sc1"], [f"s_add_u32 s{sPF}, s{sPF}, 1024"]], 1, 4)
        S.emit(P, [m(u, iw, ic) for iw in range(8) for ic in range(8)])
    mf = []; done = {}
    for n in range(16, 32): mf += [m(14, *t) for t in tiles(role, n)]
    for n in range(16): mf += [m(14, *t) for t in tiles(role, n)]+[m(15, *t) for t in tiles(role, n)]; done[n] = len(mf)-1
    for n in range(16, 32): mf += [m(15, *t) for t in tiles(role, n)]; done[n] = len(mf)-1
    S = Sched(128); sync(S); sync(S, 62)
    S.stream(kvreads(15), 1, step=1)
    place_dma(S, step_dma(14, role), 25, 3, 61); place_dma(S, step_dma(15, role), 63, 3)
    if role: S.stream([f"v_subrev_u32 v{vWR+d}, 8192, v{vWR+d}" for d in range(8)], 26)
    qr = qreads_misc(16); items = qr[:4]
    for d in range(8): items += wreads(qW+4*d, 16, d)
    S.stream(items+qr[4:], 96, step=1)
    g = 0
    for n in range(32):
        f, s2 = F[n], S2[n]; it = [f"v_cvt_pk_bf16_f32 v{f}, v{f}, v{f+1}", f"v_cvt_pk_bf16_f32 v{f+1}, v{f+2}, v{f+3}"]
        if s2 >= 256:
            t = S2[12 if n >= 13 else n-1]; it += [f"v_accvgpr_read_b32 v{t+k}, {rr(s2+k)}" for k in range(4)]; s2 = t
        it += [f"v_cvt_pk_bf16_f32 v{f+2}, v{s2}, v{s2+1}", f"v_cvt_pk_bf16_f32 v{f+3}, v{s2+2}, v{s2+3}"]
        g = S.stream(it, max(g, done[n]+4))[-1]
        if n < NPRE: S.place(kvstore(n), g+1, tag='kv')
    S.emit(P, mf)
def akdma(kind, b):
    base = (KR if kind == 'K' else VR)+(b % 8)*8192
    return [[f"s_add_u32 m0, s{sMQ}, {base-WB}"], [f"s_add_u32 s{sT0}, s{sMQ}, {(b*16384+(8192 if kind == 'V' else 0)-WB) & 0xffffffff}"]] + \
           [[f"buffer_load_dwordx4 v{vL16}, s[20:23], s{sT0} offen offset:{q*1024} sc1 lds"] for q in range(2)]
def flagset(P, kind, lab=None, v=vT):
    if lab: P(f"s_cmp_lg_u32 s{sW}, 0\ns_cbranch_scc1 {lab}")
    P(f"s_mov_b64 exec, 1\nv_mov_b32 v{v}, 1")
    if kind < 0: P(f"buffer_atomic_add v{v}, off, s[24:27], 0 sc1")
    else: P(f"s_lshl2_add_u32 s{sT1}, s{sJ}, s{sKF}\nbuffer_store_dword v{v}, off, s[76:79], s{sT1} offset:{32*kind} sc1")
    if kind == 0: P(f"s_lshl2_add_u32 s{sT1}, s{sQUAD}, s{sPFL}\nbuffer_store_dword v{v}, off, s[76:79], s{sT1} sc1")
    P("s_mov_b64 exec, -1")
    if lab: P(f"{lab}:")
def polld(reg, sb=sKF):
    if sb is None: return [[f"buffer_load_dword v{reg}, off, s[24:27], 0 sc1"]]
    return [[f"v_bfe_u32 v{reg}, v0, 2, 7"], [f"buffer_load_dword v{reg}, v{reg}, s[76:79], s{sb} offen sc1"]]
def pollchk(P, reg, mask, lab, sb=sKF):
    P(f"""{lab}_r:
    v_cmp_lt_u32 vcc, {0 if sb else 255}, v{reg}
    s_and_b32 s{sT0}, vcc_lo, {mask}
    s_cmp_eq_u32 s{sT0}, {mask}""")
    P(f"s_cbranch_scc1 {lab}", 'pollok')
    if Cfg.safe:
        P("s_add_u32 s45, s45, 1\ns_cmp_gt_u32 s45, 0x40000"); P(f"s_cbranch_scc1 {lab}", 'never')
    P("s_sleep 2"); P(polld(reg, sb)); P(f"s_waitcnt vmcnt(0)\ns_branch {lab}_r\n{lab}:")
def qphase(P, zero_regs):
    P(f"s_lshl_b32 s{sMQ}, s{sW}, 11\ns_add_u32 s{sMQ}, s{sMQ}, {WB}")
    nst = {16: 2, 17: 2, 18: 2, 19: 2, 20: 2, 21: 2, 22: 1, 23: 2, 24: 2, 25: 1, 26: 2, 27: 2, 28: 1}
    pro = {28: ['K0', 'K1', 'K6'], 29: ['V0', 'K2', 'V1'], 30: ['K3', 'V2', 'V3'], 31: ['K4', 'K5', 'V4', 'K7']}
    n = NPRE; zero_regs = list(zero_regs)
    for u in range(16, 32):
        p = u & 1; z = 'z' if u == 16 else None
        mf = [mfma(QA[d*4+t], qW+4*d, qX[p]+4*t, z) for d in range(8) for t in range(4)]
        mf += [mfma(qZ+4*t, qG+4*(u % 4), qX[p]+4*t, z) for t in range(4)]
        mf += [mfma(qBU+8*t+4*c, qXP[p]+4*t, qB[p]+4*c, z) for t in range(4) for c in range(2)]
        o = 0
        S = Sched(len(mf)); sync(S)
        if u == 22: S.raw[0] = lambda P: flagset(P, 0, 'LA_f1')
        if u == 28: S.raw[0] = lambda P: pollchk(P, vT2, 0xff, 'LA_p1')
        if u == 31: S.raw[0] = lambda P: flagset(P, 1, 'LA_f2')
        if u < 31:
            for d in range(8): S.stream(wreads(qW+4*d, u+1, d), 4*d+3+o, step=1)
            S.stream(qreads_misc(u+1), 1+o, step=3)
        G = []
        for k in range(nst.get(u, 0)): G.append([kvstore(n)]); n += 1
        G += step_dma(u, None)
        if u == 25: G += polld(vT2)
        if u == 20: G += polld(vT2, None)
        if u == 24: S.raw[0] = lambda P: pollchk(P, vT2, 1, 'LA_p0', None)
        if u == 19: G += ssm_loads()
        for kb in pro.get(u, []): G += akdma(kb[0], int(kb[1]))
        place_dma(S, G, 1+o, 2)
        if u in (23, 24): S.stream(ssm_consts()[:26] if u == 23 else ssm_consts()[26:], 1)
        if u >= 30:
            k = 40 if u == 30 else len(zero_regs)
            S.stream([f"v_mov_b32 v{r}, 0" if r < 256 else f"v_accvgpr_write_b32 {rr(r)}, 0" for r in zero_regs[:k]], 1); zero_regs = zero_regs[k:]
        S.emit(P, mf)
    assert n == 32
```

```python
from ka1 import *
vKA, vVA, vVB, vG, vTRI, vPL = 1, 2, 3, 4, 18, 20
vCq = 40; vS = 200; vP = [[232, 236, 240, 244], [248, 252, 64, 68]]; vO = 72
aQ, aK, aV, aL, aONE = A(0), A(96), A(128), A(160), A(184)
Oreg = [vO, vO+32, vO+64, vO+96, A(0), A(224)]
SET1, SET2 = [0, 1, 2, 3], [4, 5, 2, 3]
sF1, sM1, sB1, sFK, sMK, sBK, sBV, sKo, sVo, sN, sINC, sINC7, sPASS = 4, 5, 6, 7, 8, 9, 10, 11, 12, 13, 14, 15, 16
sCT = 88; sCH = 92; sEX = 93; sQS = 94
XA2 = 147456
bW, bC, sVF = 36, 38, 17
OC = lambda t, ks: 72+16*t+4*ks if t < 2 else vP[t-2][ks]
def dmaWo(dh, base):
    G = [[f"s_add_u32 s18, s{sHQ}, {dh}"], ["s_and_b32 s18, s18, 3"], ["s_lshl_b32 s18, s18, 17"], [f"s_lshl_b32 s19, s{sW}, 11"], [f"s_add_u32 s19, s19, {base}"]]
    for ks in range(4):
        G += [[f"s_add_u32 m0, s19, {ks*8192}"]]+([["s_add_u32 s18, s18, 32768"]] if ks else [])
        G += [[Ins(f"buffer_load_dwordx4 v{bW+q}, s[28:31], s18 offen offset:{q*1024} lds", 'wo')] for q in range(2)]
    return G
FULL = [['f']*4, ['f']*4]
def cmul_add(h, l, u):
    return [f"v_pk_fma_f32 {vr(u,2)}, {vr(h,2)}, {vr(l,2)}, {vr(u,2)} op_sel_hi:[1,0,1]",
            f"v_pk_fma_f32 {vr(u,2)}, {vr(h,2)}, {vr(l,2)}, {vr(u,2)} op_sel:[1,1,0] op_sel_hi:[0,1,1] neg_lo:[0,1,0]"]
def rdu(t, d): return [f"v_accvgpr_read_b32 v{d+c}, {rr(qBU+8*(t>>2)+4*c+(t&3))}" for c in range(2)]
def att_scalars(P):
    P(f"""s_and_b32 s3, s{sW}, 1
    s_lshr_b32 s33, s{sW}, 1
    s_lshl_b32 s34, s3, 12
    s_add_u32 s{sBK}, s34, {KR}
    s_add_u32 s{sBV}, s34, {VR}
    s_cmp_eq_u32 s33, 0
    s_cselect_b32 s{sB1}, s{sBK}, s{sBV}
    s_cselect_b32 s{sM1}, 0, {5*8192}
    s_cselect_b32 s{sF1}, {8*16384-(5*16384+8192)}, 0
    s_cselect_b32 s{sINC}, 16384, 0
    s_add_u32 s{sINC}, s{sINC}, 8192
    s_add_u32 s{sF1}, s{sF1}, s34
    s_add_u32 s{sF1}, s{sF1}, {5*16384+8192}
    s_cmp_eq_u32 s{sJ}, 7
    s_cselect_b32 s{sINC7}, s{sINC}, 16384
    s_lshl_b32 s35, s{sJ}, 2
    s_add_u32 s35, s35, s33
    s_add_u32 s35, s35, 14
    s_lshl_b32 s{sFK}, s35, 14
    s_add_u32 s{sFK}, s{sFK}, s34
    s_lshl_b32 s{sMK}, s35, 13
    s_and_b32 s{sMK}, s{sMK}, 0xffff
    s_mov_b32 s{sKo}, 8192
    s_mov_b32 s{sVo}, 0
    v_add_u32 v{vKA}, 8192, v0
    v_add_u32 v{vVB}, {VR}, v0
    v_add_u32 v{vVA}, {VR}, v0""")
def qepi(P):
    h = None
    for t in range(16):
        d = 24+2*(t % 4); P(rdu(t, d))
        if t: P(cmul_add(h, vC, d))
        h = d
    P(f"""s_and_b32 s3, s{sW}, 1
    s_sub_u32 s34, 15, s{sJ}
    s_cmp_lt_u32 s{sW}, 2
    s_cselect_b32 s34, s{sJ}, s34
    s_lshl_b32 s{sCH}, s34, 1
    s_add_u32 s{sCH}, s{sCH}, s3
    s_lshl_b32 s34, s{sCH}, 9
    s_lshl_b32 s35, s{sH}, 14
    s_add_u32 s34, s34, s35
    s_add_u32 s34, s34, {WS_E}
    v_lshrrev_b32 v22, 1, v0""")
    P(f"buffer_store_dwordx2 {vr(h,2)}, v22, s[76:79], s34 offen sc1", 'kv')
    for ops in (["v_accvgpr_read_b32 v{g}, {z}"], ["v_cvt_pk_bf16_f32 v{g}, v{g}, v{g}"], ["v_lshlrev_b32 v{g}, 16, v{g}"], ["v_mul_f32 v{g}, 0xbfb8aa3b, v{g}"],
                ["v_exp_f32 v{g}, v{g}"], ["v_add_f32 v{g}, 1.0, v{g}"], ["v_rcp_f32 v{g}, v{g}"], ["v_cvt_pk_bf16_f32 v{g}, v{g}, v{g}"], ["v_lshlrev_b32 v{g}, 16, v{g}"]):
        for t in range(4): P(ops[0].format(g=vG+t, z=rr(qZ+4*t)))
    P(f"""s_mul_i32 s34, s{sQUAD}, {128*20480}
    s_lshl_b32 s35, s{sHQ}, 12
    s_add_u32 s34, s34, s35
    s_add_u32 s34, s34, {WS_CTX}
    s_mul_i32 s35, s{sJ}, {8*20480}
    s_mul_i32 s32, s{sW}, 20480
    s_add_u32 s33, s34, s35
    s_add_u32 s{sCT}, s33, s32
    s_sub_u32 s{sCT+1}, s33, s32
    s_add_u32 s{sCT+1}, s{sCT+1}, {7*20480}
    s_sub_u32 s33, s34, s35
    s_add_u32 s33, s33, {120*20480}
    s_add_u32 s{sCT+2}, s33, s32
    s_sub_u32 s{sCT+3}, s33, s32
    s_add_u32 s{sCT+3}, s{sCT+3}, {7*20480}
    s_lshr_b32 s33, s{sW}, 1
    s_mul_i32 s{sEX}, s33, {XA2}
    s_lshl_b32 s34, s3, 13
    s_add_u32 s{sEX}, s{sEX}, s34
    v_add_u32 v22, s{sEX}, v0
    s_lshl_b32 s34, s3, 14
    s_add_u32 s34, s34, {XA2}
    s_sub_u32 s34, s34, s{sEX}
    v_add_u32 v23, s34, v0
    s_lshl_b32 s{sQS}, s2, 2
    s_add_u32 s{sQS}, s{sQS}, s{sW}
    s_lshl_b32 s{sQS}, s{sQS}, 13
    s_add_u32 s{sQS}, s{sQS}, {WS_QS}
    s_add_u32 s{sQS+1}, s{sQS}, 4096
    s_lshl_b32 s34, s{sJ}, 16
    s_sub_u32 s22, 0x100000, s34
    s_mov_b32 s34, 0x3e0293ee
    s_mov_b32 s35, 0x3e0293ee
    s_mov_b32 s{sPASS}, 0""")
    for t in (2, 3, 0, 1):
        for ks in range(4):
            a, b = QA[8*ks+t], QA[8*ks+4+t]
            for x in (a, a+2, b, b+2): P(f"v_pk_mul_f32 {vr(x,2)}, {vr(x,2)}, s[34:35]")
            P(f"""v_cvt_pk_bf16_f32 v{a}, v{a}, v{a+1}
            v_cvt_pk_bf16_f32 v{a+1}, v{a+2}, v{a+3}
            v_cvt_pk_bf16_f32 v{a+2}, v{b}, v{b+1}
            v_cvt_pk_bf16_f32 v{a+3}, v{b+2}, v{b+3}""")
            if t >= 2: P(f"ds_write_b128 v22, {vr(a,4)} offset:{((t-2)*4+ks)*1024}")
            else:
                P(f"buffer_store_dwordx4 {vr(a,4)}, v0, s[76:79], s{sQS+t} offen offset:{ks*1024}")
                for k in range(4): P(f"v_accvgpr_write_b32 {rr(aQ+16*t+4*ks+k)}, v{a+k}")
    P(f"""v_bfe_u32 v24, v0, 4, 4
    v_lshrrev_b32 v25, 8, v0
    v_lshrrev_b32 v26, 1, v24
    v_xor_b32 v26, v26, v25
    v_and_b32 v27, 16, v0
    v_lshl_or_b32 v27, v25, 10, v27
    v_lshl_or_b32 v27, v26, 5, v27
    s_lshl_b32 s34, s{sW}, 13
    v_add_u32 v{bW}, s34, v27
    v_xor_b32 v27, 128, v{bW}
    v_add_u32 v{bW+1}, 3072, v27
    v_lshlrev_b32 v25, 4, v25
    v_lshl_or_b32 v{bC}, v24, 10, v25
    s_lshl_b32 s34, s{sQUAD}, 19
    s_lshl_b32 s35, s{sHQ}, 8
    s_add_u32 s34, s34, s35
    s_and_b32 s{sVF}, s{sJ}, 1
    s_lshl_b32 s{sVF}, s{sVF}, 15
    s_add_u32 s{sVF}, s{sVF}, {VR}
    s_cmp_eq_u32 s3, 0
    s_cselect_b32 s52, s58, s60
    s_cselect_b32 s53, s59, s61
    s_mov_b32 s54, 0x80000
    s_mov_b32 s55, 0x20000
    s_mov_b32 s38, 0x200000
    s_mov_b32 s39, 0x20000
    s_mov_b32 s66, 1024
    s_mov_b32 s67, 0x20000
    s_mov_b32 s70, 0x400000
    s_mov_b32 s71, 0x20000""")
    srd(P, 28, 46, 47, '0x7fd00', 's34')
    att_scalars(P)
    P(f"""v_bfe_u32 v24, v0, 4, 4
    v_lshrrev_b32 v25, 8, v0
    v_lshlrev_b32 v25, 2, v25
    v_sub_u32 v24, v24, v25
    v_mov_b32 v26, 0xffff""")
    for k in range(2):
        P(f"""v_cmp_le_i32 vcc, {2*k}, v24
        v_cndmask_b32 v{vTRI+k}, 0, v26, vcc
        v_cmp_le_i32 vcc, {2*k+1}, v24
        v_cndmask_b32 v{vTRI+k}, v{vTRI+k}, -1, vcc""")
    P("v_mov_b32 v26, 0x3f803f80")
    for k in range(4): P(f"v_accvgpr_write_b32 {rr(aONE+k)}, v26")
    for r in range(vCq, vCq+24, 2): P(f"v_mov_b64 {vr(r,2)}, 0")
    w = Ins('WAITVM kv, 3'); w.lg = 0
    P('EPOCH kv'); P(w); P('s_barrier')
    for i in range(8): P(f"ds_read_b128 {rr(aQ+32+4*i,4)}, v22 offset:{i*1024}")
    P("LA_att:")
    for i in range(8): P(f"ds_read_b128 {rr(aK+4*i,4)}, v0 offset:{KR+i*1024}")
LATEZ = list(range(164, 200))+[A(r) for r in range(160, 184)]+[A(r) for r in range(240, 256)]
EARLYZ = [A(r) for r in range(224, 240)]+list(range(72, 164))
zmov = lambda r: f"v_mov_b32 v{r}, 0" if r < 256 else f"v_accvgpr_write_b32 {rr(r)}, 0"
def dmaops(so, n=4): return [[f"buffer_load_dwordx4 v0, s[20:23], s{so} offen offset:{q*1024} sc1 lds"] for q in range(n)]
def dma1():
    return [[f"s_add_u32 m0, s{sM1}, s{sB1}"]]+dmaops(sF1)+[[f"s_add_u32 s{sF1}, s{sF1}, 16384"], [f"s_add_u32 s{sM1}, s{sM1}, 8192"], [f"s_and_b32 s{sM1}, s{sM1}, 0xffff"]]
def dma2():
    return [[f"s_add_u32 m0, s{sMK}, s{sBK}"], [f"s_xor_b32 s{sT1}, s{sMK}, 0x8000"], [f"s_sub_u32 s{sT0}, s{sFK}, 57344"]]+dmaops(sFK)+[[f"s_add_u32 m0, s{sT1}, s{sBV}"]]+dmaops(sT0) + \
           [[f"s_add_u32 s{sFK}, s{sFK}, 32768"], [f"s_add_u32 s{sMK}, s{sMK}, 16384"], [f"s_and_b32 s{sMK}, s{sMK}, 0xffff"]]
def dmaX(w):
    return [[f"s_lshl_b32 s{sT0}, s{sJ}, 15"], [f"s_add_u32 s{sT1}, s{sT0}, {13*8192}"], [f"s_and_b32 s{sT1}, s{sT1}, 0xffff"], [f"s_add_u32 m0, s{sT1}, {KR+w*2048}"],
            [f"s_lshl_b32 s{sT0}, s{sT0}, 1"], [f"s_add_u32 s{sT0}, s{sT0}, {13*16384+w*2048}"]]+dmaops(sT0, 2)
NH = 26
def sm_items(vis, par, k0, k1):
    R = []
    for c in range(k0//2, k1//2):
        kt, qt, hf = c >> 3, (c >> 1) & 3, c & 1; s = vS+16*kt+4*qt+2*hf; p = vP[par][qt]+2*kt+hf; v = vis[kt][qt]
        if v == 'n':
            if vis[1-kt][qt] != 'n': R.append((kt, qt, [], [f"v_mov_b32 v{p}, 0"]))
            continue
        post = [f"v_cvt_pk_bf16_f32 v{p}, v{s}, v{s+1}"]
        if v == 't': post.append(f"v_and_b32 v{p}, v{p}, v{vTRI+hf}")
        R.append((kt, qt, [f"v_exp_f32 v{s}, v{s}", f"v_exp_f32 v{s+1}, v{s+1}"], post))
    return R
def body(P, n, setA, visA, setB, visB, G=(), kread=True, incK='8192', incV='8192', head=True, allexp=False, vnext=False, vread=True,
         bar=3, extra=(), extra_lo=1, raw={}, pre=(), loopctl=None, estep=2):
    mf = []; done = {}; first = {}; klast = {}; vfirst = {}; vlast = {}; pfirst = {}
    if visA:
        for kt in range(2):
            for ks in range(4):
                for qt in range(4):
                    if visA[kt][qt] == 'n': continue
                    s = vS+16*kt+4*qt; i = setA[qt]
                    first.setdefault((kt, qt), len(mf)); done[(kt, qt)] = len(mf); klast[4*kt+ks] = len(mf)
                    mf.append(mfma(s, aK+16*kt+4*ks, aQ+16*i+4*ks, vCq+4*i if ks == 0 else None))
    nA = len(mf)
    if visB:
        live = [qt for qt in range(4) if visB[0][qt] != 'n' or visB[1][qt] != 'n']
        for dt in range(8):
            for qt in live:
                vfirst.setdefault(dt, len(mf)); vlast[dt] = len(mf); pfirst.setdefault(qt, len(mf))
                mf.append(mfma(Oreg[setB[qt]]+4*dt, aV+4*dt, vP[n & 1][qt]))
        for qt in live: mf.append(mfma(aL+4*setB[qt], aONE, vP[n & 1][qt]))
    N = len(mf); S = Sched(N); S.raw = dict(raw)
    for g in raw: S.used[g] = 8; S.nsal[g] = 3
    if bar is not None:
        w = Ins(f'WAITVM kv, {bar}'); w.lg = 0; S.put(0, [Ins('EPOCH kv'), w, 's_barrier'])
    cg = []
    def softmax(items, lo, dl):
        g = lo
        for kt, qt, ex, post in items:
            hi = dl(kt, qt)
            if ex:
                e = max(g, done[(kt, qt)]+4) if hi is None else g
                if hi is not None and e+2 > hi-1: e = max(1, hi-3)
                pos = S.stream(ex, e, None if hi is None else hi-1, step=estep); g = pos[-1]+estep; e = pos[-1]+1
            else: e = g
            if hi is not None: e = min(e, hi)
            pp = S.stream(post, e, hi); cg.append(pp[0])
        return g
    g = 1
    if visB and head:
        g = softmax(sm_items(visB, n & 1, NH, 32), 1, lambda kt, qt: min(first.get((kt, qt), 99), pfirst[qt]-1)-1)
    if visA: softmax(sm_items(visA, (n+1) & 1, 0, 32 if allexp else NH), g, lambda kt, qt: None)
    def reads(items):
        g = 1
        for lo, hi, t in items:
            lo = max(lo, g); l = S.mk(t); c = [x for x in cg if lo <= x <= min(hi, lo+4) and x < N and S.fits(x, l)]
            p = S.put(min(c), l) if c else S.place(l, min(lo, hi), hi); g = p+1 if p < hi else p
        return g
    def upd(so, inc, va, vb, lo):
        S.stream([f"s_add_u32 s{so}, s{so}, {inc}", f"s_and_b32 s{so}, s{so}, 0xffff", (lo, f"v_add_u32 v{va}, s{so}, v{vb}")], 1, step=1)
    if visB and vread:
        g = reads([(1, max(1, vfirst[dt]-5), f"ds_read_b128 {rr(aV+4*dt,4)}, v{vVA} offset:{dt*1024}") for dt in range(8)])
        if not vnext: upd(sVo, incV, vVA, vVB, g)
    if vnext:
        S.put(-1, [f"s_add_u32 s{sVo}, s{sVo}, {incV}", f"s_and_b32 s{sVo}, s{sVo}, 0xffff", f"v_add_u32 v{vKA}, s{sVo}, v{vVB}"])
        reads([(vlast[dt], N-1, f"ds_read_b128 {rr(aV+4*dt,4)}, v{vKA} offset:{dt*1024}") for dt in range(8)])
    if kread:
        g = reads([(max(klast.get(i, 0), min(N-37+4*i, N-14+i)), N-1, f"ds_read_b128 {rr(aK+4*i,4)}, v{vKA} offset:{KR+i*1024}") for i in range(8)])
        upd(sKo, incK, vKA, 0, g)
    if pre: place_dma(S, pre, 1, 2)
    if G: place_dma(S, G, 4 if pre else 1, 4 if N > 50 else 2)
    if extra: place_x(S, extra, extra_lo)
    if loopctl: S.place(f"s_sub_u32 s{sN}, s{sN}, 1", 1)
    S.emit(P, mf)
    if loopctl:
        if loopctl[1]: pollchk(P, vPL, 0xff00, loopctl[1])
        P(f"s_cmp_lg_u32 s{sN}, 0\ns_cbranch_scc1 {loopctl[0]}")
def place_x(S, items, lo):
    g = lo
    for it in items:
        l = S.mk(it); k = l[0].kind
        p = S.place(l, g+1 if k not in ('valu', 'salu') else g); g = p+(0 if k in ('valu', 'salu') else 1)
def oepi(idx, lreg, first):
    o = Oreg[idx]; R = [f"v_subrev_u32 v{21 if first else 22}, 0x30800000, v{lreg}"]
    if not first: R.append("v_max_u32 v21, v21, v22")
    R += [f"v_rcp_f32 v{lreg}, v{lreg}", f"v_mul_f32 v{lreg}, v{lreg}, v{vG+idx}"]
    return R
def oepi2(idx, lreg, pk):
    o = Oreg[idx]; R = []
    for ks in range(4):
        a = o+8*ks
        if pk: R += [f"v_pk_mul_f32 {vr(a+k,2)}, {vr(a+k,2)}, {vr(lreg&~1,2)} op_sel:[0,{lreg&1}] op_sel_hi:[1,{lreg&1}]" for k in range(0, 8, 2)]
        else: R += [f"v_mul_f32 v{a+k}, v{a+k}, v{lreg}" for k in range(8)]
        R += [f"v_cvt_pk_bf16_f32 v{OC(idx,ks)+k}, v{a+2*k}, v{a+2*k+1}" for k in range(4)]
        R.append(Ins(f"buffer_store_dwordx4 {vr(OC(idx,ks),4)}, v0, s[76:79], s{sCT+idx} offen offset:{ks*1024} sc1", 'cx'))
    return R
sX, sXC, vOA, aX = 8, 12, 2, A(224)
def xprep():
    xs = [f"s_lshl_b32 s34, s{sJ}, 3", f"s_add_u32 s{sX}, s34, s{sW}", f"s_sub_u32 s{sX+3}, 127, s{sX}", f"s_sub_u32 s{sX+1}, s34, s{sW}", f"s_add_u32 s{sX+1}, s{sX+1}, 7", f"s_sub_u32 s{sX+2}, 127, s{sX+1}",
          f"s_lshl3_add_u32 s{sXC}, s{sHQ}, s{sQUAD}", f"s_lshl_b32 s{sXC}, s{sXC}, 5"]
    for t in range(4): xs += [f"s_lshl_b32 s{sX+t}, s{sX+t}, 14", f"s_add_u32 s{sX+t}, s{sX+t}, s{sXC}"]
    return xs+["v_bfe_u32 v25, v0, 4, 4", "v_lshrrev_b32 v1, 8, v0", "v_lshlrev_b32 v1, 3, v1", f"v_lshl_or_b32 v{vOA}, v25, 10, v1"]
def dispatch(P, lab):
    for w in range(3): P(f"s_cmp_eq_u32 s{sW}, {w}"); P(f"s_cbranch_scc1 {lab}{w}", f'w{w}')
    P(f"s_branch {lab}3")
def attention(P):
    zx = [zmov(r) for r in LATEZ]
    qp = [f"ds_read_b128 {rr(aQ+64+4*i,4)}, v23 offset:{i*1024}" for i in range(8)]
    def peeled(vis): body(P, -1, SET1, vis, None, None, G=dma1(), pre=polld(vPL), extra=qp+zx, estep=1)
    def lowepi(): P([f"v_accvgpr_read_b32 v24, {rr(aL)}", f"v_accvgpr_read_b32 v25, {rr(aL+4)}"]+oepi(0, 24, True)+oepi(1, 25, False)+oepi2(0, 24, True)+oepi2(1, 25, True))
    P(f"s_cmp_eq_u32 s{sJ}, 0"); P("s_cbranch_scc1 LA_j0", 'j0')
    peeled(FULL)
    P(f"s_lshl_b32 s{sN}, s{sJ}, 1\ns_sub_u32 s{sN}, s{sN}, 1\nLA_l1:")
    body(P, 0, SET1, FULL, SET1, FULL, G=dma1()); body(P, 1, SET1, FULL, SET1, FULL, G=dma1(), loopctl=('LA_l1', 'LA_p2'))
    body(P, 0, SET1, FULL, SET1, FULL, G=dma1())
    dispatch(P, 'LA_ma')
    P("LA_j0:"); dispatch(P, 'LA_pm')
    P("LA_l2:")
    body(P, 0, SET2, FULL, SET2, FULL, G=dma2(), incK='16384', incV='16384'); body(P, 1, SET2, FULL, SET2, FULL, G=dma2(), incK='16384', incV='16384', loopctl=('LA_l2', None))
    body(P, 0, SET2, FULL, SET2, FULL, G=dma2(), incK=f's{sINC}', incV='16384')
    dispatch(P, 'LA_d1')
    for w in range(4):
        kh = w >> 1
        vis = lambda tl, i: [['f' if (t is None or 2*i+kt < t) else 't' if 2*i+kt == t else 'n' for t in tl] for kt in range(2)]
        v1 = [vis([w, 7-w, None, None], i) for i in range(4)]
        v2 = [vis([w ^ 2, 7-(w ^ 2), w, 7-w], i) for i in (kh, 3-kh)]
        P(f"LA_pm{w}:"); peeled(v1[0]); P(f"s_branch LA_b1{w}")
        P(f"LA_ma{w}:"); body(P, 1, SET1, v1[0], SET1, FULL, G=dma1())
        P(f"LA_b1{w}:"); body(P, 0, SET1, v1[1], SET1, v1[0], G=dma1())
        f3 = {0: lambda P: flagset(P, 2, None, 22)} if w == 0 else {}
        body(P, 1, SET1, v1[2], SET1, v1[1], G=dma1(), incK=str(8192*(1+kh)), raw=f3)
        pollchk(P, vPL, 0xff00, f'LA_p2{w}')
        body(P, 0, SET1, v1[3], SET1, v1[2], G=dma1(), incK=f's{sINC7}')
        z0 = [zmov(A(r)) for r in range(32)]
        P(f"s_cmp_eq_u32 s{sJ}, 7"); P(f"s_cbranch_scc1 LA_t7{w}", 'j7')
        body(P, 1, SET2, FULL, SET1, v1[3], G=dma1()+dmaX(w), incK='16384', incV=str(8192*(1+kh)), extra=z0)
        lowepi(); P(f"s_lshl_b32 s{sN}, s{sJ}, 1\ns_sub_u32 s{sN}, 13, s{sN}\ns_branch LA_l2")
        P(f"LA_t7{w}:"); body(P, 1, SET2, v2[0], SET1, v1[3], incV=str(8192*(1+kh)), extra=z0)
        lowepi(); P(f"s_branch LA_d2{w}")
        P(f"LA_d1{w}:"); body(P, 1, SET2, v2[0], SET2, FULL, incV='16384')
        P(f"LA_d2{w}:")
        def p3(P, w=w):
            pollchk(P, vPL, 0xff0000, f'LA_p3{w}'); pollchk(P, 24, 0xff, f'LA_p4{w}', sPFL)
            P(f"s_mov_b32 m0, {w*4096}\ns_lshl_b32 s{sT0}, s{sH}, 14\ns_add_u32 s{sT0}, s{sT0}, {WS_E+w*4096}")
            for q in range(4): P(f"buffer_load_dwordx4 v0, s[76:79], s{sT0} offen offset:{q*1024} sc1 lds", 'et')
        body(P, 0, SET2, v2[1], SET2, v2[0], kread=False, incV=f's{sINC}', allexp=True, vnext=True, bar=0, G=polld(vPL)+polld(24, sPFL)+dmaWo(0, f's{sVF}'))
        p3(P)
        body(P, 1, None, None, SET2, v2[1], kread=False, head=False, vread=False, bar=None, extra=xprep(), extra_lo=0)
        if w < 3: P("s_branch LA_fin")
def flagst(P, tag, so, off):
    P(f"WAITVM {tag}, 0\ns_mov_b64 exec, 1\nbuffer_store_dword v{vVB}, off, s[76:79], s{so} offset:{off} sc1\ns_mov_b64 exec, -1")
bR, bCR = 8, 16
def gaddr(P):
    P(f"""v_bfe_u32 v26, v0, 6, 2
    v_lshl_add_u32 v26, v27, 2, v26
    v_and_b32 v28, 7, v26
    v_lshlrev_b32 v28, 5, v28
    v_lshl_or_b32 v28, v26, 8, v28
    v_bfe_u32 v26, v0, 4, 2
    v_lshl_or_b32 v28, v26, 3, v28
    v_add_u32 v28, s{sVF}, v28""")
    for i in range(8): P(f"s_add_u32 s34, s{sQUAD}, {i+1}\ns_and_b32 s34, s34, 7\ns_lshl_b32 s34, s34, 5\nv_xor_b32 v{bR+i}, s34, v28")
def final(P):
    P("LA_fin:"); stamp(P, 5)
    P(f"""s_lshl_b32 s34, s{sW}, 14
    v_add_u32 v26, s34, v0
    v_xor_b32 v27, 0x8000, v26
    v_lshrrev_b32 v28, 2, v0
    s_lshl_b32 s34, s{sW}, 9
    s_add_u32 s34, s34, {XA2}
    v_add_u32 v28, s34, v28
    v_xor_b32 v29, 1024, v28""")
    for i in range(16): P(f"ds_write_b128 v26, {rr(Oreg[4+(i>>3)]+4*(i&7),4)} offset:{KR+i*1024}")
    for t in range(2): P(f"ds_write_b32 v28, {rr(aL+16+4*t)} offset:{t*256}")
    P(f"""v_bfe_u32 v30, v0, 4, 4
    v_lshlrev_b32 v30, 2, v30
    s_lshl_b32 s34, s{sW}, 6
    s_add_u32 s35, s34, {XA2+2048}
    v_add_u32 v31, s35, v30
    s_sub_u32 s35, {XA2+2048+7*64}, s34
    v_add_u32 v30, s35, v30""")
    for op in ("v_sub_f32 v{d}, 1.0, v{g}", "v_cvt_pk_bf16_f32 v{d}, v{d}, v{d}", "v_lshlrev_b32 v{d}, 16, v{d}", "v_add_f32 v{d}, v{d}, v{d}"):
        for t in range(4): P(op.format(d=32+t, g=vG+t))
    for t in range(4): P(f"ds_write_b32 v{31-(t&1)}, v{32+t} offset:{(t>>1)*512}")
    w = Ins('WAITVM et, 0'); w.lg = 0; P(w); P('s_barrier')
    XB = lambda i: 104+4*i if i < 8 else 200+4*(i-8)
    for t in range(2): P(f"ds_read_b32 v{32+t}, v29 offset:{t*256}")
    for i in range(12): P(f"ds_read_b128 {vr(XB(i),4)}, v27 offset:{KR+i*1024}")
    P(f"s_xor_b32 s34, s{sVF}, 0x8000"); P(dmaWo(1, 's34'))
    P([f"buffer_load_dwordx2 {rr(aX+8,2)}, v1, s[64:67], s{sXC} offen"]+[f"buffer_load_dwordx2 {rr(aX+2*t,2)}, v{vOA}, s[36:39], s{sX+t} offen" for t in range(4)])
    for t in range(2): P(f"v_accvgpr_read_b32 v{24+t}, {rr(aL+8+4*t)}\nv_add_f32 v{24+t}, v{24+t}, v{32+t}")
    P(oepi(2, 24, False)+oepi(3, 25, False))
    P(f"""v_cmp_lt_u32 vcc, {hex((40+30)<<23)}, v21
    v_mov_b32 v31, {XA2+3072}""")
    for i in range(12, 16): P(f"ds_read_b128 {vr(XB(i),4)}, v27 offset:{KR+i*1024}")
    P(f"""s_or_b32 s34, vcc_lo, vcc_hi
    v_mov_b32 v32, s34
    s_lshl_b32 s34, s{sW}, 2
    v_add_u32 v33, s34, v31
    ds_write_b32 v33, v32""")
    for t in range(2):
        for k in range(0, 32, 2): P(f"v_pk_add_f32 {vr(vO+64+32*t+k,2)}, {vr(vO+64+32*t+k,2)}, {vr(XB(8*t)+k,2)}")
        P(oepi2(2+t, 24+t, True))
    P("s_waitcnt lgkmcnt(0)\ns_barrier\nds_read_b128 v[32:35], v31")
    stamp(P, 6)
    P(dmaWo(2, 49152))
    P(f"""v_or3_b32 v32, v32, v33, v34
    v_or_b32 v32, v32, v35
    v_readfirstlane_b32 s34, v32
    s_cmp_eq_u32 s{sPASS}, 0
    s_cselect_b32 s34, s34, 0
    s_cmp_eq_u32 s34, 0""")
    P("s_cbranch_scc0 LA_redo", 'redo')
    P(f"""s_and_b32 s3, s{sW}, 1
    v_lshrrev_b32 v26, 1, v0
    s_lshl_b32 s34, s3, 9
    v_add_u32 v27, s34, v26
    ds_read_b64 v[104:105], v26""")
    for r in range(14): P(f"ds_read_b64 {vr(106+2*r,2)}, v27 offset:{r*512}")
    P(f"""s_lshr_b32 s35, s{sCH}, 1
    v_and_b32 v29, 0x78, v26
    s_lshl_b32 s34, s{sCH}, 9
    v_add_u32 v28, s34, v29
    s_cmp_eq_u32 s3, 0
    s_cselect_b64 exec, -1, 0
    s_waitcnt lgkmcnt(14)
    v_mov_b64 v[104:105], 0
    s_mov_b64 exec, -1""")
    for k in range(15):
        P(f"s_cmp_eq_u32 s35, {k}"); P("s_cbranch_scc1 LA_hd", 'hd')
        a = 106+4*k
        P(cmul_add(104, vC+4, a))
        P([f"v_pk_fma_f32 v[104:105], {vr(a,2)}, {vr(vC+4,2)}, {vr(a+2,2)} op_sel_hi:[1,0,1]", cmul_add(a, vC+4, 104)[1]])
        for r in (2*k+14, 2*k+15):
            if r < 30: P(f"ds_read_b64 {vr(106+2*r,2)}, v27 offset:{r*512}")
    P(f"""LA_hd:
    s_waitcnt lgkmcnt(0)
    s_lshl_b32 s34, s{sW}, 13
    s_add_u32 s34, s34, {KR}
    v_add_u32 v26, s34, v26
    v_add_u32 v29, s34, v29
    ds_write_b64 v26, v[104:105]""")
    for g in range(4): P(f"ds_read_b64 {vr(106+2*g,2)}, v29 offset:{g*128}")
    for g in range(3): P(f"ds_read_b64 {vr(114+2*g,2)}, v28 offset:{g*128}")
    P(f"""v_lshrrev_b32 v27, 8, v0
    v_lshlrev_b32 v27, 6, v27
    s_lshl_b32 s35, s{sW}, 8
    s_add_u32 s35, s35, {XA2+2048}
    v_add_u32 v27, s35, v27""")
    for k in range(4): P(f"ds_read_b128 {vr(120+4*k,4)}, v27 offset:{k*16}")
    for t in range(16): P(rdu(t, 136+2*t))
    for g in range(3): P(cmul_add(106+2*g, vC+2, 108+2*g))
    for g in range(3):
        P(f"s_lshl_b64 exec, -1, {16*(g+1)}"); P(cmul_add(112, vC+2, 114+2*g)); P(f"v_mov_b64 v[112:113], {vr(114+2*g,2)}")
    P("s_mov_b64 exec, -1")
    h = 112
    for t in range(16):
        u = 136+2*t; y = 168+2*t; s = 120+t
        P(cmul_add(h, vC, u)); h = u
        P(f"""v_pk_mul_f32 {vr(y,2)}, {vr(u,2)}, {vr(vC+6,2)} op_sel_hi:[1,0] neg_hi:[0,1]
        v_pk_fma_f32 {vr(y,2)}, {vr(u,2)}, {vr(vC+6,2)}, {vr(y,2)} op_sel:[1,1,0] op_sel_hi:[0,1,1] neg_lo:[0,1,0] neg_hi:[0,1,0]
        v_pk_mul_f32 {vr(y,2)}, {vr(y,2)}, {vr(s&~1,2)} op_sel:[0,{s&1}] op_sel_hi:[1,{s&1}]""")
        if t & 1: P(f"v_cvt_pk_bf16_f32 v{200+(t>>1)}, v{y-2}, v{y}\nv_cvt_pk_bf16_f32 v{208+(t>>1)}, v{y-1}, v{y+1}")
    flagst(P, 'cx', sFL+1, 0)
    P(f"""v_bfe_u32 v26, v0, 4, 4
    v_lshrrev_b32 v27, 8, v0
    v_mul_u32_u24 v28, 144, v26
    v_lshl_add_u32 v28, v27, 5, v28
    s_add_u32 s34, s34, 1024
    v_add_u32 v28, s34, v28
    v_lshrrev_b32 v29, 2, v26
    v_lshl_add_u32 v29, v27, 3, v29
    v_mul_u32_u24 v29, 144, v29
    v_and_b32 v26, 3, v26
    v_lshl_add_u32 v29, v26, 3, v29
    v_add_u32 v29, s34, v29""")
    for c in range(2):
        for k in range(2): P(f"ds_write_b128 v28, {vr(200+8*c+4*k,4)} offset:{c*16*144+k*16}")
    for T in range(4):
        for u in range(2): P(f"ds_read_b64_tr_b16 {vr(104+4*T+2*u,2)}, v29 offset:{u*4*144+T*32}")
    gaddr(P)
    P(f"""s_mul_i32 s34, s{sQUAD}, {128*20480}
    s_lshl_b32 s35, s{sHQ}, 10
    s_add_u32 s34, s34, s35
    s_mul_i32 s35, s{sCH}, {4*20480}
    s_add_u32 s34, s34, s35""")
    for T in range(4):
        P(f"s_add_u32 s35, s34, {WS_CTX+16384+T*20480}\nbuffer_store_dwordx4 {vr(104+4*T,4)}, v0, s[76:79], s35 offen sc1", 'hs')
def redo(P):
    P(f"""LA_redo:
    s_mov_b32 s{sPASS}, 1
    s_waitcnt vmcnt(0)""")
    for t in range(2):
        for ks in range(4): P(f"buffer_load_dwordx4 {rr(aQ+16*t+4*ks,4)}, v0, s[76:79], s{sQS+t} offen offset:{ks*1024} sc1")
    P(f"""v_bfe_u32 v24, v0, 4, 4
    v_lshrrev_b32 v25, 8, v0
    v_lshlrev_b32 v25, 2, v25
    v_sub_u32 v24, v24, v25
    s_lshl_b32 s34, s{sJ}, 7
    s_lshl_b32 s35, s{sW}, 4
    s_add_u32 s33, s34, s35
    v_add_u32 v26, s33, v24
    s_sub_u32 s33, s34, s35
    s_add_u32 s33, s33, 112
    v_add_u32 v27, s33, v24
    s_sub_u32 s33, s35, s34
    s_add_u32 s33, s33, 1920
    v_add_u32 v28, s33, v24
    s_add_u32 s33, s34, s35
    s_sub_u32 s33, 2032, s33
    v_add_u32 v29, s33, v24
    v_mov_b32 v30, 0xff800000
    s_mov_b32 s34, 0""")
    for t in range(4): P(f"v_mov_b32 v{32+t}, v30")
    P("LA_mx:\ns_add_u32 s35, s34, 4096")
    for i in range(8): P(f"buffer_load_dwordx4 {rr(aK+4*i,4)}, v0, s[20:23], s{34+(i>>2)} offen offset:{(i&3)*1024} sc1")
    for kt in range(2):
        for ks in range(4):
            for qt in range(4): P(mfma(vS+16*kt+4*qt, aK+16*kt+4*ks, aQ+16*qt+4*ks, 'z' if ks == 0 else None))
    for kt in range(2):
        for qt in range(4):
            for i in range(4):
                s = vS+16*kt+4*qt+i
                P(f"v_cmp_le_i32 vcc, {16*kt+i}, v{26+qt}\nv_cndmask_b32 v{s}, v30, v{s}, vcc\nv_max_f32 v{32+qt}, v{32+qt}, v{s}")
    for qt in range(4): P(f"v_subrev_u32 v{26+qt}, 32, v{26+qt}")
    P(f"""s_add_u32 s34, s34, 16384
    s_cmp_lt_u32 s34, s22
    s_cbranch_scc1 LA_mx
    s_lshl_b32 s34, s{sW}, 10
    s_add_u32 s34, s34, {XA2+4096}
    v_add_u32 v24, s34, v0
    ds_write_b128 v24, v[32:35]
    v_and_b32 v25, 0xf0, v0
    v_add_u32 v25, s34, v25
    v_xor_b32 v26, 2048, v25
    s_waitcnt lgkmcnt(0)
    s_barrier""")
    for p in range(2):
        for g in range(4): P(f"ds_read_b128 {vr(vS+16*p+4*g,4)}, v{25+p} offset:{g*256}")
    for idx in range(6):
        b = vS+idx if idx < 4 else vS+16+idx-2
        P(f"v_max3_f32 v24, v{b}, v{b+4}, v{b+8}\nv_max_f32 v24, v24, v{b+12}")
        for k in range(4): P(f"v_sub_f32 v{vCq+4*idx+k}, 0, v24")
    for r in EARLYZ: P(zmov(r))
    P("s_barrier")
    for i in range(8): P(f"ds_write_b128 v23, {rr(aQ+64+4*i,4)} offset:{i*1024}")
    att_scalars(P)
    P("s_waitcnt lgkmcnt(0)\ns_barrier")
    for kb in ['K%d' % i for i in range(8)]+['V%d' % i for i in range(5)]:
        for g in akdma(kb[0], int(kb[1])): P(g, 'kv')
    P("s_waitcnt vmcnt(0)\ns_barrier\ns_branch LA_att")
```

```python
from ka2 import *
S1 = 12
def gemm(P):
    acc = lambda i, t: 104+16*i+4*t
    cb = lambda s, t: OC(t, s) if s < 4 else A(16*(s-4)+4*t)
    sO, sMSK, sA = 4, 12, 13
    vPO, vPA, vSEL, vXD, vM, vTM = 20, 21, 88, 72, 24, 160
    sC = [0, 4, 92, 96, 88]
    grp = [(s, i) for s in range(S1) for i in range(8)]+[(s, i) for i in range(8) for s in range(S1, 20)]
    mf = [mfma(acc(i, t), 40+4*(g % 6), cb(s, t), 'z' if s == 0 else None) for g, (s, i) in enumerate(grp) for t in range(4)]
    def areads(g):
        s, i = grp[g]; d = 40+4*(g % 6)
        if s < 16: return [f"ds_read_b64_tr_b16 {vr(d+2*u,2)}, v{bR+i} offset:{(s&3)*8192+u*4096+(32768 if s>>2 == 2 else 0)}" for u in range(2)]
        return [f"ds_read_b128 {vr(d,4)}, v{bCR+(i&1)} offset:{((s-16)>>1)*1024+(s&1)*512}"]
    pld = polld(vPO, sFL); poll = lambda lab, mask: lambda P: pollchk(P, vPO, mask, lab, sFL)
    P(f"""    s_lshl_b32 s34, 1, s{sHQ}
    s_xor_b32 s34, s34, 15
    s_lshl_b32 s35, s{sW}, 2
    s_lshl_b32 s{sMSK}, s34, s35
    s_xor_b32 s{sA}, s{sVF}, 0x8000
    s_sub_u32 s{sA}, s{sA}, 16384""")
    W3 = dmaWo(3, 16384); P(W3[:6])
    w = Ins('WAITVM wo, 0'); w.lg = 0; P(w); P('s_barrier'); stamp(P, 7)
    LA = 4
    for g in range(LA): P(areads(g))
    S = Sched(640)
    for g in range(3, 640, 4): S.nsal[g] = 1
    last = {}
    for g in range(LA, 160):
        for u, r in enumerate(areads(g)): S.put(4*(g-LA)+u, r)
    for g, (s, i) in enumerate(grp):
        if s == 3: S.put(4*(g-LA)+3, f"v_xor_b32 v{bR+i}, 0x8000, v{bR+i}")
        if s == 7: S.put(4*(g-LA)+3, f"v_subrev_u32 v{bR+i}, s{sA}, v{bR+i}")
    def vm(G, g0, tag='ld'):
        g = g0; p = 4*g0-2
        for it in G:
            l = S.mk(it, tag)
            if l[0].kind in VMK:
                while 4*g+2 <= p or S.used[4*g+2] or S.nsal[4*g+2]: g += 1
                p = S.put(4*g+2, l)+1; g += 1
            else: p = S.place(l, max(p, 0))
        return g
    C0 = [f"s_lshr_b32 s41, s{sW}, 1", f"s_lshl1_add_u32 s40, s{sHQ}, s41", "s_lshl_b32 s40, s40, 9", f"s_add_u32 s40, s40, s{sQUAD}", "s_lshl_b32 s40, s40, 7",
          "s_lshl_b32 s41, s41, 13", f"s_mul_i32 s34, s3, {XA2}", "s_add_u32 s41, s41, s34"]; Cg = []
    for k in range(4):
        for hp in range(2):
            Cg += [[f"s_add_u32 m0, s41, {k*2048+hp*1024-hp*64}"], [Ins(f"buffer_load_dwordx4 v{bC}, s[52:55], s40 offen offset:{hp*64} lds", 'wo')]]
        Cg += [["s_add_u32 s40, s40, 16384"]]
    def cs(dh): return ([f"s_add_u32 s35, s{sHQ}, {dh}", "s_and_b32 s35, s35, 3"] if dh < 4 else ["s_mov_b32 s35, 4"])+[f"s_sub_u32 s35, s35, s{sHQ}", "s_lshl_b32 s35, s35, 12"]+[f"s_add_u32 s{sC[dh]+t}, s{sCT+t}, s35" for t in range(4)]
    def cld(dh): return [[f"buffer_load_dwordx4 {rr(cb(4*dh+ks,t),4)}, v0, s[76:79], s{sC[dh]+t} offen offset:{ks*1024} sc1"] for ks in range(4) for t in range(4)]
    def raw(g, f): assert not S.slots[4*g+2]; S.raw[4*g+2] = f; S.used[4*g+2] = 8; S.nsal[4*g+2] = 3
    PG = Cfg.pg
    g = vm(W3[6:], 0); g = vm(pld, max(g, PG-7)); gC = g; g = vm(Cg, g)
    g = max(g, PG); raw(g, poll('LG_p1', f's{sMSK}')); raw(g+4, lambda P: flagst(P, 'hs', sFL+2, 64)); print('poll1 group', g)
    g1 = g; g = vm(cld(1), g+1); g = vm(cld(2), g); c3 = cld(3); g = vm(c3[:8], g); g = vm(pld, g); g = vm(c3[8:], g); g2 = g
    raw(g, poll('LG_p2', '0xffff0000')); g = vm(cld(4), g+1); print('loads done group', g)
    S.put(4*(8*S1-LA)-2, [Ins('WAITVM wo, 0'), 's_barrier'])
    p = S.stream(C0, 0)[-1]; assert p < 4*gC-2, (p, gC)
    p = S.stream(cs(1), p)[-1]; assert p < 4*g1+4, (p, g1)
    p = S.stream(cs(2)+cs(3)+cs(4)+[f"s_lshl_b32 s{sX+t}, s{sX+t}, 1" for t in range(4)], p)[-1]; assert p < 4*(g1+17), p
    xd = ["v_bfe_u32 v25, v0, 4, 4", "v_lshrrev_b32 v26, 1, v1", "v_sub_u32 v25, v25, v26",
          "v_cmp_gt_u32 vcc, 4, v25", "v_lshlrev_b32 v25, 4, v25", "v_mov_b32 v28, 0x3f80", "v_mov_b32 v29, 0", "v_cndmask_b32 v28, 0, v28, vcc", f"v_lshlrev_b64 {vr(vSEL+2,2)}, v25, v[28:29]"]
    xd += [f"v_mov_b32 v{vSEL+k}, 0" for k in (0, 1, 4, 5)]+["v_and_b32 v28, 511, v0", "v_lshrrev_b32 v29, 9, v0", f"v_mul_u32_u24 v29, {XA2}, v29", "v_add_u32 v30, v28, v29", f"v_lshlrev_b32 v{vOA}, 1, v{vOA}"]
    for k in range(2): xd += [f"v_accvgpr_read_b32 v{33+2*k}, {rr(aX+8+k)}", f"v_lshlrev_b32 v{32+2*k}, 16, v{33+2*k}", f"v_and_b32 v{33+2*k}, 0xffff0000, v{33+2*k}"]
    for t in range(4):
        xd += [f"v_sub_f32 v{vG+t}, 1.0, v{vG+t}", f"v_cvt_pk_bf16_f32 v{vG+t}, v{vG+t}, v{vG+t}", f"v_lshlrev_b32 v{vG+t}, 16, v{vG+t}"]
        for k in range(2):
            d = vXD+4*t+2*k
            xd += [f"v_accvgpr_read_b32 v{d+1}, {rr(aX+2*t+k)}", f"v_lshlrev_b32 v{d}, 16, v{d+1}", f"v_and_b32 v{d+1}, 0xffff0000, v{d+1}", f"v_mul_f32 v{d}, v{d}, v{32+2*k}", f"v_mul_f32 v{d+1}, v{d+1}, v{33+2*k}",
                   f"v_cvt_pk_bf16_f32 v{d}, v{d}, v{d+1}", f"v_and_b32 v{d+1}, 0xffff0000, v{d}", f"v_lshlrev_b32 v{d}, 16, v{d}"]
    p = S.stream(xd, 4*32+1, step=1)[-1]; print('xd end group', p//4, g2); assert p < 4*(g2+9)
    p = S.stream([f"v_fmac_f32 v{acc(7,t)+k}, v{vXD+4*t+k}, v{vG+t}" for t in range(4) for k in range(4)], 32*S1+4)[-1]
    R = 20-S1
    for i in range(8):
        g0 = 8*S1+R*i; gc = g0+(16-S1)-LA-R+1
        S.stream([f"s_add_u32 s35, s{sQUAD}, {i+1}", "s_and_b32 s35, s35, 7"]+([f"s_and_b32 s18, s2, 0xf8", "s_or_b32 s18, s18, s35", f"s_lshl2_add_u32 s18, s18, s{sW}", "s_lshl_b32 s18, s18, 14", f"s_add_u32 s{sO+(i&3)}, s18, {WS_PART+i*2048}"] if i < 7 else [])
                 + ["s_lshl_b32 s35, s35, 11", f"v_add_u32 v{bCR+(i&1)}, s35, v30"], 4*gc, 4*(gc+R-1)-1, step=1)
        if i < 7:
            p = 4*(g0+R)+3
            for c in range(2):
                a = acc(i, 2*c)
                p = S.stream([f"v_cvt_pk_bf16_f32 v{a+k}, v{a+2*k}, v{a+2*k+1}" for k in range(4)]+[f"v_min_u32 v{a+k}, -2, v{a+k}" for k in range(4)], p)[-1]
                S.place(f"buffer_store_dwordx4 {vr(a,4)}, v0, s[76:79], s{sO+(i&3)} offen offset:{c*1024} sc1", p+1, p+4, tag='pt')
    ib = [f"buffer_load_dwordx4 {vr(104+4*n,4)}, v0, s[76:79], s{12+(n>>2)} offen offset:{(n&3)*1024} sc1" for n in range(14)]
    S.stream([f"s_lshl2_add_u32 s34, s2, s{sW}", "s_lshl_b32 s34, s34, 14"]+[f"s_add_u32 s{12+k}, s34, {WS_PART+k*4096}" for k in range(4)], 4*(160-3*R), step=1)
    S.stream(ib, 640-Cfg.ibl, step=2)
    S.emit(P, mf); stamp(P, 8)
    P("LG_r:")
    for n in range(14):
        for u in range(2):
            t = 2*(n & 1)+u
            P(mfma(vTM+4*t, vSEL+2-2*u, 104+4*n, acc(7, t) if n < 2 else None))
            P(f"v_max3_u32 v{vM}, v{104+4*n+2*u}, v{105+4*n+2*u}, {'0' if n+u == 0 else 'v%d' % vM}")
    P(f"v_cmp_eq_u32 vcc, -1, v{vM}"); P("s_cbranch_vccz LG_ok", 'pollok')
    if Cfg.safe: P("s_add_u32 s45, s45, 1\ns_cmp_gt_u32 s45, 0x40000"); P(f"s_cbranch_scc1 LG_ok", 'never')
    P(ib); P("s_branch LG_r\nLG_ok:")
    for t in range(4): P(f"buffer_store_dwordx4 {vr(vTM+4*t,4)}, v{vOA}, s[68:71], s{sX+t} offen")
```

```python
import sys, os
from kb import *
NAME = "gated_mix__compressed_kv_cla__ssm_conv_s5__prompt"
def desc(name, nv, acc):
    return f""".p2align 6
.amdhsa_kernel {name}
.amdhsa_next_free_vgpr {nv}
.amdhsa_next_free_sgpr 102
.amdhsa_accum_offset {acc}
.amdhsa_group_segment_fixed_size 0
.amdhsa_kernarg_size 152
.amdhsa_user_sgpr_count 2
.amdhsa_user_sgpr_kernarg_segment_ptr 1
.amdhsa_system_sgpr_workgroup_id_x 1
.end_amdhsa_kernel
"""
def head(P, n): P(f".globl {n}\n.p2align 8\n.type {n},@function\n{n}:")
def tsflush(P):
    if not Cfg.ts: return
    P(f"""s_lshl_b32 s34, s2, 2
    s_add_u32 s34, s34, s{sW}
    s_lshl_b32 s34, s34, 7
    s_add_u32 s34, s34, {WS_TS}
    v_lshrrev_b32 v1, 2, v0
        s_mov_b64 exec, 0xffff
    buffer_store_dword v39, v1, s[76:79], s34 offen""")
Cfg.pg = 16; Cfg.ibl = 30
def build(out, ts=False, safe=False):
    Cfg.ts = ts; Cfg.safe = safe
    P = Prog(); KA = NAME+"_kernel"
    head(P, KA)
    setup(P)
    stamp(P, 1)
    P(f"s_cmp_ge_u32 s{sW}, 2"); P("s_cbranch_scc1 LA_v", 'role')
    kv(P, 0); P("s_branch LA_q\nLA_end:\ns_endpgm\nLA_v:"); kv(P, 1); P("LA_q:")
    stamp(P, 2)
    qphase(P, EARLYZ); stamp(P, 3); qepi(P); stamp(P, 4); attention(P); final(P); gemm(P)
    stamp(P, 9)
    if ts: P("s_waitcnt vmcnt(0)")
    stamp(P, 10); tsflush(P)
    P("LA_last:\ns_endpgm"); redo(P)
    jobs = []
    for w in range(4):
        for jj in (0, 3, 7):
            for var in range(2):
                pol = {'role': [int(w >= 2)], 'w0': [int(w == 0)], 'w1': [int(w == 1)], 'w2': [int(w == 2)], 'j0': [int(jj == 0)], 'j7': [int(jj == 7)],
                       'pollok': [1] if var == 0 else [0, 1], 'LA_f0': [int(w != 0)], 'LA_f1': [int(w != 0)], 'LA_f2': [int(w != 0)], 'ng': [var], 'hd': [0] if var == 0 else [1], 'redo': [0] if var == 0 else [1, 0],
                       'LA_l1': [1, 1, 0] if var == 0 else [0], 'LA_l2': [1, 1, 0] if var == 0 else [0]}
                jobs.append((KA, pol))
    P.finalize(jobs)
    ref = open('cdna_kernels/'+NAME+'.s.ref').read().split('\n')
    hdr = [l for l in ref if l.startswith(';') and '@launch' not in l and not l.startswith('; Override') and not l.startswith('; grid=')]
    hdr += [f"; @launch kernel={KA} grid=(256,1,1) block=(256,1,1) lds=163840"]
    s = '\n'.join(hdr)+'\n.amdgcn_target "amdgcn-amd-amdhsa--gfx950"\n.text\n'+P.text()+'.section .rodata,"a"\n'+desc(KA, 512, 256)
    open(out, 'w').write(s)
    open(out+'.log', 'w').write('\n'.join(P.log))
    print(out, len(s), 'bytes', len(P.L), 'ins', len(P.log), 'log')
if __name__ == '__main__':
    build('k.s'); build('kts.s', True, True)
```
